```python
import torch

def _softmax(x, axis=-1):
    return torch.softmax(x, dim=axis)
def _gelu(x):
    return torch.nn.functional.gelu(x, approximate="tanh")
def _silu(x):
    return torch.nn.functional.silu(x)
def _sigmoid(x):
    return torch.sigmoid(x)
def _layernorm(x, axis=-1, eps=1e-5):
    m = x.mean(dim=axis, keepdim=True)
    v = x.var(dim=axis, keepdim=True, unbiased=False)
    return (x - m) / torch.sqrt(v + eps)
def _scatter_add(tgt, idx, src, axis=0):
    return tgt.clone().index_add_(axis, idx, src)
def _segment_sum(src, seg, n):
    out = torch.zeros((n,) + src.shape[1:], dtype=src.dtype)
    return out.index_add_(0, seg, src)
def _pad(x, pw):
    flat = tuple(v for pair in reversed(pw) for v in pair)
    return torch.nn.functional.pad(x, flat)

kernel_name = 'standalone__ssm_conv_s4d__prompt'

def setup_inputs():

    _w = (lambda a: (lambda t: t.to(torch.bfloat16) if t.is_floating_point() else t)(torch.as_tensor(a)))
    Bsz, L, D, N = 1, 2048, 640, 192
    return {
        "u": _w((lambda *s: torch.randn(*s, dtype=torch.bfloat16) * 0.05)(Bsz, L, D)),
        "log_A_real": _w((lambda *s: torch.randn(*s, dtype=torch.bfloat16) * 6.4)(D, N) * 0.5),
        "A_imag": _w((lambda *s: torch.randn(*s, dtype=torch.bfloat16) * 0.05)(D, N) * 3.14),
        "C_real": _w((lambda *s: torch.randn(*s, dtype=torch.bfloat16) * 0.05)(D, N) / N ** 0.5),
        "C_imag": _w((lambda *s: torch.randn(*s, dtype=torch.bfloat16) * 0.05)(D, N) / N ** 0.5),
        "log_dt": _w((lambda *s: torch.randn(*s, dtype=torch.bfloat16) * 0.05)(D) * 0.5 - 4.0),
        "D_skip": _w((lambda *s: torch.randn(*s, dtype=torch.bfloat16) * 0.05)(D)),
    }

def reference(u, log_A_real, A_imag, C_real, C_imag, log_dt, D_skip):
    L = u.shape[1]
    dt = torch.exp(log_dt)
    A = -torch.exp(log_A_real) + 1j * A_imag
    C = (C_real + 1j * C_imag) * dt[:, None]
    pos = (lambda x, dt: x.to(dt))(torch.arange(L), log_dt.dtype)
    P = torch.exp((A * dt[:, None])[:, :, None] * pos[None, None, :])
    K = 2.0 * torch.einsum("dn,dnl->dl", C, P).real
    L2 = 2 * L
    u_t = (lambda x, *d: x.permute(*d))(u, 0, 2, 1)
    Kf = (lambda x, *a, **k: torch.fft.rfft(x.float(), *a, **k))(K, L2)
    Uf = (lambda x, *a, **k: torch.fft.rfft(x.float(), *a, **k))(u_t, L2)
    y = (lambda x, *a, **k: torch.fft.irfft(x, *a, **k).to(torch.bfloat16))(Uf * Kf[None, :, :], L2)[:, :, :L]
    y = (lambda x, *d: x.permute(*d))(y, 0, 2, 1)
    return y + u * D_skip[None, None, :]
```

```python
import re

TRANS = ('v_exp_f32', 'v_log_f32', 'v_rcp_f32', 'v_rsq_f32', 'v_sqrt_f32', 'v_sin_f32', 'v_cos_f32')

_reg_re = re.compile(r'(?<![\w.])(-?\|?)(v|s|a)(\d+|\[(\d+):(\d+)\])')


def regs_of(tok):
    out = set()
    tok = tok.strip()
    if tok in ('vcc',):
        return {('vcc', 0)}
    if tok in ('exec', 'exec_lo', 'exec_hi'):
        return {('exec', 0)}
    if tok == 'm0':
        return {('m0', 0)}
    m = re.fullmatch(r'-?(?:abs\()?\|?(v|s|a)(\d+)\|?\)?', tok)
    if m:
        return {(m.group(1), int(m.group(2)))}
    m = re.fullmatch(r'-?(v|s|a)\[(\d+):(\d+)\]', tok)
    if m:
        return {(m.group(1), i) for i in range(int(m.group(2)), int(m.group(3)) + 1)}
    return out


class Ins:
    def __init__(self, text):
        self.text = text
        t = text.split(';')[0].strip()
        self.label = t.endswith(':')
        self.op = t.split()[0] if t else ''
        self.w = set()
        self.r = set()
        self.srcc = set()
        self.kind = 'other'
        if self.label or not t or t.startswith('.'):
            self.kind = 'meta'
            return
        rest = t[len(self.op):].strip()
        ops = []
        depth = 0
        cur = ''
        for ch in rest:
            if ch == '[':
                depth += 1
            if ch == ']':
                depth -= 1
            if ch == ',' and depth == 0:
                ops.append(cur)
                cur = ''
            else:
                cur += ch
        ops.append(cur)
        last = ops[-1].strip().split()
        ops[-1] = last[0] if last else ''
        self.mods = ' '.join(last[1:])
        ops = [o.strip() for o in ops]
        op = self.op
        self.dpp = 'dpp' in op or 'row_' in self.mods or 'wave_' in self.mods or 'quad_perm' in self.mods
        if op.startswith('v_mfma'):
            self.kind = 'mfma'
            self.w = regs_of(ops[0])
            self.r = regs_of(ops[1]) | regs_of(ops[2])
            self.srcc = regs_of(ops[3])
            self.passes = 8 if '32x32' in op else 4
        elif op.startswith('v_cmp'):
            self.kind = 'valu'
            self.w = regs_of(ops[0])
            for o in ops[1:]:
                self.r |= regs_of(o)
        elif op.startswith('v_readfirstlane') or op.startswith('v_readlane'):
            self.kind = 'valu'
            self.rfl = True
            self.w = regs_of(ops[0])
            for o in ops[1:]:
                self.r |= regs_of(o)
        elif op.startswith('v_'):
            self.kind = 'valu'
            self.w = regs_of(ops[0])
            for o in ops[1:]:
                self.r |= regs_of(o)
            if op.startswith('v_fmac') or op.startswith('v_pk_fmac') or self.dpp:
                self.r |= self.w
            if op.startswith('v_cndmask') and len(ops) == 3:
                self.r |= {('vcc', 0)}
        elif op.startswith('ds_read') or op.startswith('ds_bpermute') or op.startswith('ds_swizzle'):
            self.kind = 'ds'
            self.w = regs_of(ops[0])
            for o in ops[1:]:
                self.r |= regs_of(o)
        elif op.startswith('ds_'):
            self.kind = 'ds'
            for o in ops:
                self.r |= regs_of(o)
            if 'addtid' in op:
                self.r |= {('m0', 0)}
        elif op.startswith('buffer_load') or op.startswith('global_load'):
            self.kind = 'vmem'
            self.w = regs_of(ops[0])
            for o in ops[1:]:
                self.r |= regs_of(o)
        elif op.startswith('buffer_store') or op.startswith('global_store') or 'atomic' in op:
            self.kind = 'vmem'
            for o in ops:
                self.r |= regs_of(o)
            self.wide = 'x3' in op or 'x4' in op
            if self.wide:
                self.data = regs_of(ops[0]) if op.startswith('buffer') else regs_of(ops[1])
        elif op.startswith('s_'):
            self.kind = 'salu'
            if op in ('s_nop', 's_waitcnt', 's_barrier', 's_endpgm', 's_sleep', 's_setprio', 's_branch') or op.startswith('s_cbranch') or op.startswith('s_cmp'):
                for o in ops:
                    self.r |= regs_of(o)
            else:
                self.w = regs_of(ops[0])
                for o in ops[1:]:
                    self.r |= regs_of(o)
                if 'saveexec' in op:
                    self.w |= {('exec', 0)}

    def states(self):
        if self.kind == 'meta':
            return 0
        if self.op == 's_nop':
            return int(self.text.split(';')[0].split()[1], 0) + 1
        return 1


def required(p, c):
    need = 0
    if p.kind == 'valu':
        vw = {x for x in p.w if x[0] in 'va'}
        sw = {x for x in p.w if x[0] in ('s', 'vcc')}
        cr = c.r | c.srcc
        if re.sub(r'_e(32|64)$', '', p.op) in TRANS and (vw & cr) and c.kind in ('valu', 'mfma', 'ds', 'vmem'):
            need = max(need, 1)
        if getattr(c, 'rfl', False) and (vw & c.r):
            need = max(need, 1)
        if c.kind == 'valu' and getattr(c, 'dpp', False) and (vw & c.r):
            need = max(need, 2)
        if c.kind == 'mfma' and (vw & cr):
            need = max(need, 2)
        if sw & c.r:
            if c.kind == 'valu':
                need = max(need, 2)
            if c.kind == 'vmem':
                need = max(need, 5)
        if ('exec', 0) in p.w:
            need = max(need, 5)
    if p.kind == 'salu' and ('m0', 0) in p.w and ('m0', 0) in c.r and c.kind in ('ds', 'vmem'):
        need = max(need, 1)
    if p.kind == 'mfma':
        n_ab = {4: 8, 8: 12}[p.passes]
        n_ov = {4: 6, 8: 10}[p.passes]
        if c.kind == 'mfma':
            if p.w & c.r:
                need = max(need, n_ab)
            if p.w & c.srcc and not (p.w == c.srcc and p.passes == c.passes):
                need = max(need, n_ov)
            if (p.w & c.w) and not (p.w & c.srcc):
                need = max(need, n_ab)
        elif c.kind in ('valu', 'ds', 'vmem'):
            if p.w & (c.r | c.w):
                need = max(need, n_ab)
            if c.kind == 'valu' and (p.srcc & c.w):
                need = max(need, {4: 3, 8: 7}[p.passes])
    if p.kind == 'vmem' and getattr(p, 'wide', False) and (p.data & c.w):
        need = max(need, 2)
    return need


class Asm:
    def __init__(self):
        self.ins = []

    def __call__(self, text):
        for line in text.strip('\n').split('\n'):
            line = line.strip()
            if line:
                self.ins.append(Ins(line))

    def label(self, name):
        self.ins.append(Ins(name + ':'))

    def comment(self, s):
        self.ins.append(Ins('; ' + s))

    def pad(self, seq, fence_at_labels=True):
        out = []
        for c in seq:
            if c.kind != 'meta':
                dist = 0
                need_pad = 0
                for p in reversed(out):
                    if dist > 24:
                        break
                    if p.kind != 'meta':
                        n = required(p, c)
                        if n > dist:
                            need_pad = max(need_pad, n - dist)
                    if p.op in ('s_branch', 's_endpgm'):
                        break
                    dist += p.states()
                while need_pad > 0:
                    k = min(need_pad, 16)
                    out.append(Ins('s_nop %d' % (k - 1)))
                    need_pad -= k
            out.append(c)
        return out

    def finalize(self):
        self.ins = self.pad(self.ins)
        self.check_branches()
        return '\n'.join(('' if i.label else '    ') + i.text for i in self.ins) + '\n'

    def check_branches(self):
        labels = {i.text.split(':')[0]: k for k, i in enumerate(self.ins) if i.label}
        for k, b in enumerate(self.ins):
            if b.op == 's_branch' or b.op.startswith('s_cbranch'):
                tgt = b.text.split(';')[0].split()[1]
                t = labels[tgt]
                pre = [x for x in self.ins[max(0, k - 30):k + 1] if x.kind != 'meta']
                post = [x for x in self.ins[t:t + 30] if x.kind != 'meta']
                seq = pre[:-1] + [Ins('s_nop 0')] + post
                n = len(pre)
                for ci in range(n, len(seq)):
                    c = seq[ci]
                    dist = 0
                    for pi in range(ci - 1, -1, -1):
                        p = seq[pi]
                        if pi < n:
                            need = required(p, c)
                            if need > dist:
                                raise RuntimeError('hazard across branch %s: %s -> %s needs %d has %d' % (b.text, p.text, c.text, need, dist))
                        dist += p.states()
                        if dist > 24:
                            break
                    if c.op in ('s_branch', 's_endpgm'):
                        break
```

```python
import struct, sys
from asmlib import Asm

NAME = 'standalone__ssm_conv_s4d__prompt'
DEBUG_STAMPS = '--stamps' in sys.argv
DUMP = '--dump' in sys.argv


def f2u(x):
    return struct.unpack('<I', struct.pack('<f', x))[0]


def u2f(u):
    return struct.unpack('<f', struct.pack('<I', u))[0]


LOG2E = 1.4426950408889634
LH_U = f2u(LOG2E) & 0xFFFFFF00
LL_U = f2u(LOG2E - u2f(LH_U))
NLOG2E_U = f2u(-LOG2E)

TROW = 272
TBL = 16 * TROW
KB = 12 * TBL
KCOPY = 4224
KCH = 2 * KCOPY
UB = KB + 4 * KCH
UCOPY = 4128
UCH = 4 * UCOPY
FB = UB + 4 * UCH
LDS_BYTES = FB + 64
STG = 0
NWG = 160


def rho(i):
    ip = (i + 12) & 15
    return ((ip & 7) >> 1) + 8 * (ip & 1) + 4 * (ip >> 3)


A = Asm()


def vp(n):
    return 'v[%d:%d]' % (n, n + 1)


def vq(n):
    return 'v[%d:%d]' % (n, n + 3)


def cmul(d, a, b, conj_b=False):
    if not conj_b:
        A('v_pk_mul_f32 %s, %s, %s op_sel:[0,0] op_sel_hi:[0,1]' % (vp(d), vp(a), vp(b)))
        return 'v_pk_fma_f32 %s, %s, %s, %s op_sel:[1,1,0] op_sel_hi:[1,0,1] neg_lo:[0,1,0]' % (vp(d), vp(a), vp(b), vp(d))
    else:
        A('v_pk_mul_f32 %s, %s, %s op_sel:[0,0] op_sel_hi:[0,1] neg_hi:[0,1]' % (vp(d), vp(a), vp(b)))
        return 'v_pk_fma_f32 %s, %s, %s, %s op_sel:[1,1,0] op_sel_hi:[1,0,1]' % (vp(d), vp(a), vp(b), vp(d))


def stamp(idx):
    if not DEBUG_STAMPS:
        return
    A('s_memtime s[60:61]')
    A('s_waitcnt lgkmcnt(0)')
    A('s_sub_u32 s60, s60, s62')
    A('v_mov_b32 v126, s60')
    A('v_mov_b32 v127, %d' % (idx * 4))
    A('s_cmp_eq_u32 s2, 0')
    A('s_cselect_b64 exec, 1, 0')
    A('global_store_dword v127, v126, s[56:57]')
    A('s_mov_b64 exec, -1')


def exp_bf16(dst, src, t0, t1):
    A('v_mul_f32 v%d, s40, v%d' % (t0, src))
    A('v_mul_f32 v%d, s41, v%d' % (t1, src))
    A('v_exp_f32 v%d, v%d' % (t0, t0))
    A('v_exp_f32 v%d, v%d' % (t1, t1))
    A('v_mul_f32 v%d, v%d, v%d' % (t0, t0, t1))
    A('v_cvt_pk_bf16_f32 v%d, v%d, v%d' % (t0, t0, t0))
    A('v_and_b32 v%d, 0xffff0000, v%d' % (dst, t0))


A('s_cmp_ge_u32 s2, %d' % NWG)
A('s_cbranch_scc1 L_end')
A('s_load_dwordx16 s[16:31], s[0:1], 0')
if DEBUG_STAMPS:
    A('s_load_dwordx2 s[56:57], s[0:1], 64')
    A('s_memtime s[62:63]')
A('v_lshrrev_b32 v1, 6, v0')
A('v_and_b32 v0, 63, v0')
A('v_readfirstlane_b32 s3, v1')
A('s_and_b32 s4, s2, 7')
A('s_mul_i32 s4, s4, 20')
A('s_lshr_b32 s5, s2, 3')
A('s_add_u32 s4, s4, s5')
A('s_cmp_ge_u32 s3, 12')
A('s_cbranch_scc1 L_io')

A('s_and_b32 s5, s3, 3')
A('s_lshr_b32 s6, s3, 2')
A('s_lshl_b32 s7, s4, 2')
A('s_add_u32 s7, s7, s5')
A('s_mul_i32 s8, s7, 384')
A('s_lshl_b32 s9, s6, 7')
A('s_add_u32 s8, s8, s9')
A('v_lshl_add_u32 v1, v0, 1, s8')
A('v_mov_b32 v2, 0')
A('v_mov_b32 v3, 0')
A('v_mov_b32 v4, 0')
A('v_mov_b32 v5, 0')
A('s_lshl_b32 s9, s7, 1')
A('s_and_b32 s9, s9, 0xfffffffc')
A('s_mul_i32 s11, s3, %d' % TBL)
A('s_mov_b32 m0, s11')
A('s_mov_b32 s40, 0x%08x' % LH_U)
A('s_mov_b32 s41, 0x%08x' % LL_U)
A('s_waitcnt lgkmcnt(0)')
A('s_load_dword s10, s[26:27], s9')
A('global_load_short_d16_hi v2, v1, s[18:19]')
A('global_load_short_d16_hi v3, v1, s[20:21]')
A('global_load_short_d16_hi v4, v1, s[22:23]')
A('global_load_short_d16_hi v5, v1, s[24:25]')
A('v_add_u32 v6, 12, v0')
A('v_and_b32 v6, 15, v6')
A('v_bfe_u32 v7, v6, 1, 2')
A('v_and_b32 v8, 1, v6')
A('v_lshl_add_u32 v7, v8, 3, v7')
A('v_lshrrev_b32 v8, 3, v6')
A('v_lshl_add_u32 v7, v8, 2, v7')
A('v_mul_u32_u24 v116, %d, v7' % TROW)
A('v_bfe_u32 v8, v0, 4, 1')
A('v_lshl_add_u32 v116, v8, 7, v116')
A('v_lshrrev_b32 v8, 5, v0')
A('v_lshl_add_u32 v116, v8, 6, v116')
A('v_add_u32 v116, s11, v116')
A('s_waitcnt lgkmcnt(0)')
A('s_lshl_b32 s12, s10, 16')
A('s_and_b32 s13, s10, 0xffff0000')
A('s_bitcmp1_b32 s7, 0')
A('s_cselect_b32 s10, s13, s12')
A('v_mov_b32 v6, s10')
exp_bf16(6, 6, 7, 8)
A('s_waitcnt vmcnt(3)')
exp_bf16(2, 2, 7, 8)
A('v_mul_f32 v2, v2, v6')
A('v_mul_f32 v2, 0x%08x, v2' % NLOG2E_U)
A('s_waitcnt vmcnt(2)')
A('v_mul_f32 v3, v3, v6')
A('v_mul_f32 v3, 0.15915494, v3')
A('v_add_f32 v6, v6, v6')
E = {k: 16 + 2 * (k - 1) for k in range(1, 16)}
E16B, E256, E512, E768, E1024 = 46, 48, 50, 52, 54
TC = [56, 58, 60, 62]
XP = [64, 66]
CV = [68, 69, 70, 71]
XF, YF = 72, 88
ACC = [104, 108, 112]
A('v_mul_f32 v7, 0x41800000, v2')
A('v_mul_f32 v8, 0x43800000, v2')
A('v_mul_f32 v9, 0x41800000, v3')
A('v_mul_f32 v10, 0x43800000, v3')
A('v_fract_f32 v3, v3')
A('v_fract_f32 v9, v9')
A('v_fract_f32 v10, v10')
A('v_exp_f32 v7, v7')
A('v_cos_f32 v11, v9')
A('v_sin_f32 v12, v9')
A('v_exp_f32 v2, v2')
A('v_cos_f32 v13, v3')
A('v_sin_f32 v14, v3')
A('v_mul_f32 v%d, v7, v11' % E16B)
A('v_mul_f32 v%d, -v7, v12' % (E16B + 1))
A('v_exp_f32 v8, v8')
A('v_cos_f32 v11, v10')
A('v_sin_f32 v12, v10')
A('v_mul_f32 v%d, v2, v13' % E[1])
A('v_mul_f32 v%d, v2, v14' % (E[1] + 1))
A('s_waitcnt vmcnt(0)')
A('v_mul_f32 v%d, v4, v6' % XP[0])
A('v_mul_f32 v%d, -v5, v6' % (XP[0] + 1))
A('v_mul_f32 v%d, v8, v11' % E256)
A('v_mul_f32 v%d, v8, v12' % (E256 + 1))

cvn = [0]


def put(row, src):
    c = CV[cvn[0] % 4]
    cvn[0] += 1
    A('v_cvt_pk_bf16_f32 v%d, v%d, v%d' % (c, src, src + 1))
    A('ds_write_addtid_b32 v%d offset:%d' % (c, TROW * rho(row)))


t0_plan = [(2, 1, 1), (3, 2, 1), (4, 2, 2), (5, 4, 1), (6, 4, 2), (7, 4, 3), (8, 4, 4)] + [(8 + k, 8, k) for k in range(1, 8)]
for i in range(16):
    cur = XP[i & 1]
    nxt = XP[(i + 1) & 1]
    f1 = f2 = None
    if i < 15:
        f1 = cmul(nxt, cur, E16B)
    if i < len(t0_plan):
        d, a, b = t0_plan[i]
        f2 = cmul(E[d], E[a], E[b])
    put(i, cur)
    if f1:
        A(f1)
    if f2:
        A(f2)
for s in range(4):
    A('ds_read_b128 %s, v116 offset:%d' % (vq(XF + 4 * s), 16 * s))
A('v_mov_b32 v%d, 0x3f80' % CV[cvn[0] % 4])
A('ds_write_addtid_b32 v%d offset:%d' % (CV[cvn[0] % 4], TROW * rho(0)))
cvn[0] += 1
f = cmul(E512, E256, E256)
put(1, E[1])
A(f)
put(2, E[2])
f = cmul(E768, E512, E256)
f2 = cmul(E1024, E512, E512)
put(3, E[3])
A(f)
A(f2)
for k in range(4, 16):
    put(k, E[k])
for s in range(4):
    A('ds_read_b128 %s, v116 offset:%d' % (vq(YF + 4 * s), 16 * s))


def mfma_tile(t, first_wait):
    for s in range(4):
        if s == 0:
            A('s_waitcnt lgkmcnt(%d)' % first_wait)
        A('v_mfma_f32_16x16x32_bf16 %s, %s, %s, %s' % (vq(ACC[t]), vq(YF + 4 * s), vq(XF + 4 * s), '0' if s == 0 else vq(ACC[t])))


t1 = []
for r in range(8):
    k = 2 * r + 2
    t1.append((r, E256, E[k] if k < 16 else E16B, k == 16))
for r in range(1, 4):
    t1.append((8 + r, E512, E[4 * r], False))
for r in range(1, 4):
    t1.append((12 + r, E768, E[4 * r], False))
pend = []
for n, (row, a, b, cj) in enumerate(t1):
    d = TC[n % 4]
    f = cmul(d, a, b, cj)
    if n == 2:
        mfma_tile(0, 0)
    if pend and n >= 2:
        while pend:
            put(*pend.pop(0))
    A(f)
    pend.append((row, d))
while pend:
    put(*pend.pop(0))
put(8, E512)
put(12, E768)
for s in range(4):
    A('ds_read_b128 %s, v116 offset:%d' % (vq(YF + 4 * s), 16 * s))
fa = cmul(TC[0], E1024, E256)
fb = cmul(TC[1], E1024, E512)
fc = cmul(TC[2], E1024, E768)
fd = cmul(TC[3], E1024, E1024)
A(fa)
A(fb)
A(fc)
A(fd)
o8 = [E[1], E[2], E[3], E[5]]
fs = [cmul(o8[0], E1024, E[8]), cmul(o8[1], TC[0], E[8]), cmul(o8[2], TC[1], E[8]), cmul(o8[3], TC[2], E[8])]
mfma_tile(1, 0)
for f in fs:
    A(f)
put(0, E1024)
put(4, TC[0])
put(8, TC[1])
put(12, TC[2])
put(2, E256)
put(3, TC[3])
put(1, o8[0])
put(5, o8[1])
put(9, o8[2])
put(13, o8[3])
for s in range(4):
    A('ds_read_b128 %s, v116 offset:%d' % (vq(YF + 4 * s), 16 * s))
A('v_lshlrev_b32 v1, 4, v0')
A('v_add_u32 v2, s11, v1')
A('s_mul_i32 s12, s5, %d' % TBL)
A('s_lshl_b32 s13, s6, 10')
A('s_add_u32 s12, s12, s13')
A('v_add_u32 v3, s12, v1')
mfma_tile(2, 0)
A('ds_write_b128 v2, %s' % vq(ACC[0]))
A('ds_write_b128 v2, %s offset:1024' % vq(ACC[1]))
A('ds_write_b128 v2, %s offset:2048' % vq(ACC[2]))
A('v_and_b32 v4, 15, v0')
A('v_lshrrev_b32 v5, 4, v0')
A('s_mul_i32 s14, s5, %d' % KCH)
A('s_add_u32 s14, s14, %d' % KB)
A('s_waitcnt lgkmcnt(0)')
stamp(1)
A('s_barrier')
A('ds_read_b128 %s, v3' % vq(16))
A('ds_read_b128 %s, v3 offset:%d' % (vq(20), 4 * TBL))
A('ds_read_b128 %s, v3 offset:%d' % (vq(24), 8 * TBL))
A('v_lshlrev_b32 v6, 5, v4')
A('s_cmp_eq_u32 s6, 1')
A('s_cbranch_scc1 L_fin1')
A('s_cmp_eq_u32 s6, 2')
A('s_cbranch_scc1 L_fin2')


def ksum():
    A('s_waitcnt lgkmcnt(1)')
    A('v_pk_add_f32 v[16:17], v[16:17], v[20:21]')
    A('v_pk_add_f32 v[18:19], v[18:19], v[22:23]')
    A('s_waitcnt lgkmcnt(0)')
    A('v_pk_add_f32 v[16:17], v[16:17], v[24:25]')
    A('v_pk_add_f32 v[18:19], v[18:19], v[26:27]')


A('v_lshl_add_u32 v6, v5, 3, v6')
A('s_add_u32 s15, s14, 4080')
A('v_sub_u32 v6, s15, v6')
A('v_lshlrev_b32 v7, 2, v0')
A('v_add_u32 v7, s14, v7')
A('v_mov_b32 v8, 0')
A('s_mov_b32 exec_hi, 0')
A('ds_write_b32 v7, v8 offset:4088')
A('ds_write_b32 v7, v8 offset:%d' % (KCOPY + 4096))
A('s_mov_b64 exec, -1')
A('s_waitcnt lgkmcnt(3)')
A('v_pk_add_f32 v[16:17], v[16:17], v[20:21]')
A('v_pk_add_f32 v[18:19], v[18:19], v[22:23]')
A('s_waitcnt lgkmcnt(2)')
A('v_pk_add_f32 v[16:17], v[16:17], v[24:25]')
A('v_pk_add_f32 v[18:19], v[18:19], v[26:27]')
A('v_cvt_pk_bf16_f32 v20, v19, v18')
A('v_cvt_pk_bf16_f32 v21, v17, v16')
A('ds_write_b64 v6, v[20:21]')
A('ds_write_b64 v6, v[20:21] offset:%d' % (KCOPY + 8))
A('s_branch L_fin_done')

A.label('L_fin1')
A('v_lshl_add_u32 v7, v5, 9, v6')
A('s_add_u32 s15, s14, 4060')
A('v_sub_u32 v7, s15, v7')
A('v_lshl_add_u32 v8, v5, 4, v6')
A('s_add_u32 s15, s14, 3556')
A('v_sub_u32 v8, s15, v8')
A('v_add_u32 v9, %d, v7' % (KCOPY + 8))
A('v_add_u32 v10, %d, v8' % (KCOPY + 8))
ksum()
A('v_cvt_pk_bf16_f32 v20, v19, v19')
A('v_cvt_pk_bf16_f32 v21, v19, v18')
A('v_cvt_pk_bf16_f32 v22, v18, v18')
A('v_cvt_pk_bf16_f32 v23, v17, v17')
A('v_cvt_pk_bf16_f32 v24, v17, v16')
A('v_cvt_pk_bf16_f32 v25, v16, v16')
A('s_mov_b32 exec_lo, 0')
for va in (7, 9):
    A('ds_write2_b32 v%d, v20, v21 offset0:0 offset1:1' % va)
    A('ds_write2_b32 v%d, v22, v22 offset0:2 offset1:3' % va)
    A('ds_write2_b32 v%d, v23, v24 offset0:4 offset1:5' % va)
    A('ds_write2_b32 v%d, v25, v25 offset0:6 offset1:7' % va)
A('s_mov_b32 exec_lo, -1')
A('s_mov_b32 exec_hi, 0')
for va in (8, 10):
    A('ds_write2_b32 v%d, v20, v21 offset0:0 offset1:1' % va)
    A('ds_write2_b32 v%d, v23, v24 offset0:2 offset1:3' % va)
A('s_mov_b64 exec, -1')
A('s_branch L_fin_done')

A.label('L_fin2')
A('v_lshl_add_u32 v7, v5, 9, v6')
A('s_add_u32 s15, s14, 2016')
A('v_sub_u32 v7, s15, v7')
A('v_add_u32 v9, %d, v7' % (KCOPY + 8))
A('v_mov_b32 v8, s14')
ksum()
A('v_cvt_pk_bf16_f32 v20, v17, v17')
A('v_cvt_pk_bf16_f32 v21, v17, v16')
A('v_cvt_pk_bf16_f32 v22, v16, v16')
A('v_cvt_pk_bf16_f32 v23, v18, v18')
A('v_cvt_pk_bf16_f32 v24, v19, v19')
for va in (7, 9):
    A('ds_write2_b32 v%d, v20, v20 offset0:0 offset1:1' % va)
    A('ds_write2_b32 v%d, v20, v21 offset0:2 offset1:3' % va)
    A('ds_write2_b32 v%d, v22, v22 offset0:4 offset1:5' % va)
    A('ds_write_b32 v%d, v22 offset:24' % va)
A('s_mov_b64 exec, -2')
for va in (7, 9):
    A('ds_write_b32 v%d, v22 offset:28' % va)
A('s_mov_b64 exec, 1')
A('ds_write_b32 v8, v23 offset:3572')
A('ds_write_b32 v8, v23 offset:%d' % (KCOPY + 3580))
A('ds_write_b32 v8, v24 offset:%d' % KCOPY)
A('ds_write_b32 v8, v24 offset:%d' % (KCOPY + 4))
A('s_mov_b64 exec, -1')

A.label('L_fin_done')
A('v_and_b32 v6, 1, v4')
A('v_mul_u32_u24 v6, %d, v6' % KCOPY)
A('v_lshrrev_b32 v7, 1, v4')
A('v_sub_u32 v7, v5, v7')
A('v_lshl_add_u32 v6, v7, 4, v6')
A('s_add_u32 s15, s14, %d' % (16 * 35))
A('v_add_u32 v1, s15, v6')
A('v_and_b32 v6, 3, v4')
A('v_lshrrev_b32 v7, 2, v4')
A('v_mul_u32_u24 v3, %d, v6' % UCOPY)
A('s_mul_i32 s15, s5, %d' % UCH)
A('s_add_u32 s15, s15, %d' % UB)
A('v_add_u32 v3, s15, v3')
A('v_lshl_add_u32 v8, v7, 3, v5')
A('v_lshl_add_u32 v2, v8, 4, v3')
A('v_add_u32 v2, 80, v2')
A('v_lshl_add_u32 v8, v7, 2, v5')
A('v_lshlrev_b32 v8, 5, v8')
A('v_lshl_add_u32 v8, v6, 2, v8')
A('s_lshl_b32 s15, s5, 12')
A('v_add_u32 v8, s15, v8')
A('v_mov_b32 v9, %d' % FB)
A('v_mov_b32 v10, 1')
A('s_waitcnt lgkmcnt(0)')
stamp(2)
A('s_barrier')
A('s_cmp_eq_u32 s6, 2')
A('s_cbranch_scc1 %s' % ('L_dump' if DUMP else 'L_end'))
A('s_cmp_eq_u32 s6, 1')
A('s_cbranch_scc1 L_convB')

A('s_setprio 2')
AC = [16, 20, 24, 28]
FA = [[32 + 4 * k for k in range(4)], [64 + 4 * k for k in range(4)]]
FBq = [[48 + 4 * k for k in range(4)], [80 + 4 * k for k in range(4)]]


def loadsA(sel):
    A('v_max_i32 v11, v2, v3')
    A('ds_read_b128 %s, v1 offset:%d' % (vq(FA[sel][0]), 512 * 7))
    A('ds_read_b128 %s, v11' % vq(FBq[sel][0]))
    for d in range(1, 4):
        A('ds_read_b128 %s, v2 offset:%d' % (vq(FBq[sel][d]), 512 * d))
    for k in range(1, 4):
        A('ds_read_b128 %s, v1 offset:%d' % (vq(FA[sel][k]), 512 * (7 - k)))
    A('v_subrev_u32 v1, 64, v1')
    A('v_subrev_u32 v2, 64, v2')


def mfmasA(sel, zero):
    for k in range(4):
        for t in range(k, 4):
            src = '0' if (zero and k == 0) else vq(AC[t])
            A('v_mfma_f32_16x16x32_bf16 %s, %s, %s, %s' % (vq(AC[t]), vq(FA[sel][k]), vq(FBq[sel][t - k]), src))


for r in range(16):
    A('v_mov_b32 v%d, 0' % (16 + r))
loadsA(0)
A('s_mov_b32 s15, 0')
A.label('L_loopA')
loadsA(1)
A('s_waitcnt lgkmcnt(8)')
mfmasA(0, False)
loadsA(0)
A('s_waitcnt lgkmcnt(8)')
mfmasA(1, False)
A('s_add_u32 s15, s15, 1')
A('s_cmp_lt_u32 s15, 4')
A('s_cbranch_scc1 L_loopA')


def stage_out(accs, t0):
    for n, acc in enumerate(accs):
        A('v_cvt_pk_bf16_f32 v%d, v%d, v%d' % (acc, acc, acc + 1))
        A('v_cvt_pk_bf16_f32 v%d, v%d, v%d' % (acc + 2, acc + 2, acc + 3))
        A('ds_write_b32 v8, v%d offset:%d' % (acc, 512 * (t0 + n)))
        A('ds_write_b32 v8, v%d offset:%d' % (acc + 2, 512 * (t0 + n) + 16))


stage_out(AC, 0)
A('s_waitcnt lgkmcnt(0)')
A('s_mov_b64 exec, 1')
A('ds_add_u32 v9, v10')
A('s_mov_b64 exec, -1')
stamp(3)
A('s_endpgm')

A.label('L_convB')
GA = [32 + 4 * k for k in range(8)]
GB = [64 + 4 * k for k in range(8)]


def ldA(k):
    A('ds_read_b128 %s, v1 offset:%d' % (vq(GA[k]), 512 * (7 - k)))


def ldB(d):
    if d == 0:
        A('ds_read_b128 %s, v11' % vq(GB[0]))
    else:
        A('ds_read_b128 %s, v2 offset:%d' % (vq(GB[d]), 512 * d))


for r in range(16):
    A('v_mov_b32 v%d, 0' % (16 + r))
A('v_max_i32 v11, v2, v3')
for k in range(8):
    ldA(k)
    ldB(7 - k)
A('s_mov_b32 s15, 0')
A.label('L_loopB')
A('v_subrev_u32 v1, 64, v1')
A('v_subrev_u32 v2, 64, v2')
A('v_max_i32 v11, v2, v3')
for k in range(8):
    if k <= 4:
        A('s_waitcnt lgkmcnt(8)')
    for t in range(max(4, k), 8):
        A('v_mfma_f32_16x16x32_bf16 %s, %s, %s, %s' % (vq(AC[t - 4]), vq(GA[k]), vq(GB[t - k]), vq(AC[t - 4])))
    ldA(k)
    ldB(7 - k)
A('s_add_u32 s15, s15, 1')
A('s_cmp_lt_u32 s15, 8')
A('s_cbranch_scc1 L_loopB')
stage_out(AC, 4)
A('s_waitcnt lgkmcnt(0)')
A('s_mov_b64 exec, 1')
A('ds_add_u32 v9, v10 offset:4')
A('s_mov_b64 exec, -1')
stamp(4)
A('s_endpgm')

A.label('L_io')
A('s_sub_u32 s5, s3, 12')
A('s_lshl_b32 s6, s5, 6')
A('v_add_u32 v1, s6, v0')
A('v_mul_u32_u24 v2, 10240, v1')
A('s_lshl_b32 s7, s4, 3')
A('v_add_u32 v2, s7, v2')
A('v_subrev_u32 v3, 3840, v2')
A('s_movk_i32 s8, 5120')
A('s_waitcnt lgkmcnt(0)')
A('s_mov_b32 s32, s16')
A('s_mov_b32 s33, s17')
A('s_mov_b32 s34, 2621440')
A('s_mov_b32 s35, 0x00020000')
A('s_mov_b32 s36, s30')
A('s_mov_b32 s37, s31')
A('s_mov_b32 s38, 2621440')
A('s_mov_b32 s39, 0x00020000')
A('s_load_dwordx2 s[42:43], s[28:29], s7')


def R(r):
    return 10 + 2 * (r + 3)


for k in range(8):
    if k < 4:
        A('buffer_load_dwordx2 %s, v2, s[32:35], 0 offen offset:%d' % (vp(R(k)), 1280 * k))
    else:
        A('buffer_load_dwordx2 %s, v2, s[32:35], s8 offen offset:%d' % (vp(R(k)), 1280 * (k - 4)))
A('s_mov_b64 exec, 1')
for k in range(3):
    A('buffer_load_dwordx2 %s, v3, s[32:35], 0 offen offset:%d' % (vp(R(k - 3)), 1280 * k))
A('s_mov_b64 exec, 0xffff')
A('v_lshrrev_b32 v4, 2, v0')
A('v_mul_u32_u24 v4, %d, v4' % UCH)
A('v_and_b32 v5, 3, v0')
A('v_mul_u32_u24 v5, %d, v5' % UCOPY)
A('v_add3_u32 v4, v4, v5, %d' % 0)
A('v_add_u32 v4, %d, v4' % UB)
for r in range(4):
    A('v_mov_b32 v%d, 0' % (40 + r))
A('v_mov_b32 v5, %d' % FB)
A('ds_write_b128 v4, v[40:43]')
A('ds_write_b64 v5, v[40:41]')
A('s_mov_b64 exec, -1')
A('v_lshlrev_b32 v6, 4, v1')
A('v_add_u32 v4, %d, v6' % UB)
A('s_mov_b32 s44, 0x05040100')
A('s_mov_b32 s45, 0x07060302')
A('s_waitcnt vmcnt(0)')
stamp(5)
for k in range(3):
    for h in range(2):
        A('v_mov_b32_dpp v%d, v%d wave_shr:1 row_mask:0xf bank_mask:0xf' % (R(k - 3) + h, R(k + 5) + h))
nq = 0
for p in (3, 2, 1, 0):
    for ch in range(4):
        qd = 40 + 4 * (nq % 4)
        nq += 1
        for w in range(4):
            r0 = p - 3 + 2 * w
            A('v_perm_b32 v%d, v%d, v%d, s%d' % (qd + w, R(r0 + 1) + (ch >> 1), R(r0) + (ch >> 1), 44 + (ch & 1)))
        A('ds_write_b128 v4, %s offset:%d' % (vq(qd), ch * UCH + p * UCOPY + 16))
A('s_waitcnt lgkmcnt(0)')
stamp(6)
A('s_barrier')
A('s_barrier')
A('s_setprio 3')
A('s_lshl_b32 s46, s42, 16')
A('s_and_b32 s47, s42, 0xffff0000')
A('s_lshl_b32 s48, s43, 16')
A('s_and_b32 s49, s43, 0xffff0000')


def T(r, ch):
    return 64 + 4 * r + ch


for r in range(8):
    for h in range(2):
        src = R(r) + h
        a, b = T(r, 2 * h), T(r, 2 * h + 1)
        A('v_lshlrev_b32 v%d, 16, v%d' % (a, src))
        A('v_and_b32 v%d, 0xffff0000, v%d' % (b, src))
        A('v_mul_f32 v%d, s%d, v%d' % (a, 46 + 2 * h, a))
        A('v_mul_f32 v%d, s%d, v%d' % (b, 47 + 2 * h, b))
        A('v_cvt_pk_bf16_f32 v%d, v%d, v%d' % (b, a, b))
        A('v_lshlrev_b32 v%d, 16, v%d' % (a, b))
        A('v_and_b32 v%d, 0xffff0000, v%d' % (b, b))
A('s_lshr_b32 s9, s5, 1')
A('s_lshl_b32 s9, s9, 2')
A('s_add_u32 s9, s9, %d' % FB)
A('v_mov_b32 v5, s9')
A.label('L_poll')
A('ds_read_b32 v7, v5')
A('s_waitcnt lgkmcnt(0)')
A('v_readfirstlane_b32 s10, v7')
A('s_cmp_eq_u32 s10, 4')
A('s_cbranch_scc1 L_poll_done')
A('s_sleep 1')
A('s_branch L_poll')
A.label('L_poll_done')
stamp(7)
for ch in range(4):
    A('ds_read_b128 %s, v6 offset:%d' % (vq(40 + 4 * ch), STG + 4096 * ch))
A('s_waitcnt lgkmcnt(0)')
for r in range(8):
    p, hh = r & 3, r >> 2
    o = 10 + 2 * (r % 4)
    tmp = [20, 21, 22, 23]
    for ch in range(4):
        y = 40 + 4 * ch + p
        if hh == 0:
            A('v_lshlrev_b32 v%d, 16, v%d' % (tmp[ch], y))
        else:
            A('v_and_b32 v%d, 0xffff0000, v%d' % (tmp[ch], y))
    for ch in range(4):
        A('v_add_f32 v%d, v%d, v%d' % (tmp[ch], tmp[ch], T(r, ch)))
    A('v_cvt_pk_bf16_f32 v%d, v%d, v%d' % (o, tmp[0], tmp[1]))
    A('v_cvt_pk_bf16_f32 v%d, v%d, v%d' % (o + 1, tmp[2], tmp[3]))
    if r < 4:
        A('buffer_store_dwordx2 %s, v2, s[36:39], 0 offen offset:%d' % (vp(o), 1280 * r))
    else:
        A('buffer_store_dwordx2 %s, v2, s[36:39], s8 offen offset:%d' % (vp(o), 1280 * (r - 4)))
if DEBUG_STAMPS:
    A('s_waitcnt vmcnt(0)')
    stamp(8)
A.label('L_end')
A('s_endpgm')
if DUMP:
    A.label('L_dump')
    A('s_cmp_lg_u32 s2, 0')
    A('s_cbranch_scc1 L_end')
    A('s_load_dwordx2 s[50:51], s[0:1], 72')
    A('s_lshl_b32 s15, s5, 10')
    A('v_lshlrev_b32 v1, 4, v0')
    A('v_add_u32 v1, s15, v1')
    A('s_mov_b32 s15, 0')
    A('s_waitcnt lgkmcnt(0)')
    A.label('L_dump_loop')
    A('v_add_u32 v2, %d, v1' % KB)
    A('ds_read_b128 v[4:7], v2')
    A('s_waitcnt lgkmcnt(0)')
    A('global_store_dwordx4 v1, v[4:7], s[50:51]')
    A('v_add_u32 v1, 4096, v1')
    A('s_add_u32 s15, s15, 1')
    A('s_cmp_lt_u32 s15, %d' % ((FB - KB) // 4096))
    A('s_waitcnt vmcnt(0)')
    A('s_cbranch_scc1 L_dump_loop')
    A('s_endpgm')

body = A.finalize()

HEAD = open('cdna_kernels/%s.s.ref' % NAME).read().split('; @launch')[0]
out = HEAD + '; @launch grid=(%d,1,1) block=(1024,1,1) lds=%d\n' % (NWG, LDS_BYTES)
out += '''.amdgcn_target "amdgcn-amd-amdhsa--gfx950"
.text
.globl %s_kernel
.p2align 8
.type %s_kernel,@function
%s_kernel:
''' % (NAME, NAME, NAME)
out += body
out += '''.section .rodata,"a"
.p2align 6
.amdhsa_kernel %s_kernel
  .amdhsa_next_free_vgpr 128
  .amdhsa_next_free_sgpr 64
  .amdhsa_accum_offset 128
  .amdhsa_group_segment_fixed_size 0
  .amdhsa_kernarg_size 80
  .amdhsa_user_sgpr_count 2
  .amdhsa_user_sgpr_kernarg_segment_ptr 1
  .amdhsa_system_sgpr_workgroup_id_x 1
.end_amdhsa_kernel
''' % NAME
dst = [a for a in sys.argv[1:] if not a.startswith('--')]
open(dst[0] if dst else 'cdna_kernels/%s.s' % NAME, 'w').write(out)
print('instructions:', sum(1 for i in A.ins if i.kind != 'meta'))
```

```python
import struct, sys
from asmlib import Asm

NAME = 'standalone__ssm_conv_s4d__prompt'
DEBUG_STAMPS = '--stamps' in sys.argv
DUMP = '--dump' in sys.argv
PREFETCH = '--prefetch' in sys.argv


def f2u(x):
    return struct.unpack('<I', struct.pack('<f', x))[0]


def u2f(u):
    return struct.unpack('<f', struct.pack('<I', u))[0]


LOG2E = 1.4426950408889634
LH_U = f2u(LOG2E) & 0xFFFFFF00
LL_U = f2u(LOG2E - u2f(LH_U))
NLOG2E_U = f2u(-LOG2E)

TROW = 272
TBL = 16 * TROW
KB = 12 * TBL
KCOPY = 4224
KCH = 2 * KCOPY
UB = KB + 4 * KCH
UCOPY = 4128
UCH = 4 * UCOPY
FB = UB + 4 * UCH
LDS_BYTES = FB + 64
STG = 0
NWG = 160


def rho(i):
    ip = (i + 12) & 15
    return ((ip & 7) >> 1) + 8 * (ip & 1) + 4 * (ip >> 3)


A = Asm()


def vp(n):
    return 'v[%d:%d]' % (n, n + 1)


def vq(n):
    return 'v[%d:%d]' % (n, n + 3)


def cmul(d, a, b, conj_b=False):
    if not conj_b:
        A('v_pk_mul_f32 %s, %s, %s op_sel:[0,0] op_sel_hi:[0,1]' % (vp(d), vp(a), vp(b)))
        return 'v_pk_fma_f32 %s, %s, %s, %s op_sel:[1,1,0] op_sel_hi:[1,0,1] neg_lo:[0,1,0]' % (vp(d), vp(a), vp(b), vp(d))
    else:
        A('v_pk_mul_f32 %s, %s, %s op_sel:[0,0] op_sel_hi:[0,1] neg_hi:[0,1]' % (vp(d), vp(a), vp(b)))
        return 'v_pk_fma_f32 %s, %s, %s, %s op_sel:[1,1,0] op_sel_hi:[1,0,1]' % (vp(d), vp(a), vp(b), vp(d))


def stamp(idx):
    if not DEBUG_STAMPS:
        return
    A('s_memtime s[60:61]')
    A('s_waitcnt lgkmcnt(0)')
    A('s_sub_u32 s60, s60, s62')
    A('v_mov_b32 v126, s60')
    A('v_mov_b32 v127, %d' % (idx * 4))
    A('s_cmp_eq_u32 s2, 0')
    A('s_cselect_b64 exec, 1, 0')
    A('global_store_dword v127, v126, s[56:57]')
    A('s_mov_b64 exec, -1')


def exp_bf16(dst, src, t0, t1):
    A('v_mul_f32 v%d, s40, v%d' % (t0, src))
    A('v_mul_f32 v%d, s41, v%d' % (t1, src))
    A('v_exp_f32 v%d, v%d' % (t0, t0))
    A('v_exp_f32 v%d, v%d' % (t1, t1))
    A('v_mul_f32 v%d, v%d, v%d' % (t0, t0, t1))
    A('v_cvt_pk_bf16_f32 v%d, v%d, v%d' % (t0, t0, t0))
    A('v_and_b32 v%d, 0xffff0000, v%d' % (dst, t0))


A('s_cmp_ge_u32 s2, %d' % NWG)
A('s_cbranch_scc1 L_end')
A('s_load_dwordx16 s[16:31], s[0:1], 0')
if DEBUG_STAMPS:
    A('s_load_dwordx2 s[56:57], s[0:1], 64')
    A('s_memtime s[62:63]')
if PREFETCH:
    A('s_getpc_b64 s[58:59]')
    A.label('L_pc')
    A('v_lshlrev_b32 v2, 6, v0')
    A('v_min_u32 v2, L_code_end-L_pc-4, v2')
    A('v_cmp_gt_u32 vcc, 192, v0')
    A('s_and_saveexec_b64 s[54:55], vcc')
    A('s_cbranch_execz L_nopf')
    A('global_load_dword v125, v2, s[58:59]')
    A.label('L_nopf')
    A('s_mov_b64 exec, -1')
A('v_lshrrev_b32 v1, 6, v0')
A('v_and_b32 v0, 63, v0')
A('v_readfirstlane_b32 s3, v1')
A('s_and_b32 s4, s2, 7')
A('s_mul_i32 s4, s4, 20')
A('s_lshr_b32 s5, s2, 3')
A('s_add_u32 s4, s4, s5')
A('s_cmp_ge_u32 s3, 12')
A('s_cbranch_scc1 L_io')

A('s_and_b32 s5, s3, 3')
A('s_lshr_b32 s6, s3, 2')
A('s_lshl_b32 s7, s4, 2')
A('s_add_u32 s7, s7, s5')
A('s_mul_i32 s8, s7, 384')
A('s_lshl_b32 s9, s6, 7')
A('s_add_u32 s8, s8, s9')
A('v_lshl_add_u32 v1, v0, 1, s8')
A('v_mov_b32 v2, 0')
A('v_mov_b32 v3, 0')
A('v_mov_b32 v4, 0')
A('v_mov_b32 v5, 0')
A('s_lshl_b32 s9, s7, 1')
A('s_and_b32 s9, s9, 0xfffffffc')
A('s_mul_i32 s11, s3, %d' % TBL)
A('s_mov_b32 m0, s11')
A('s_mov_b32 s40, 0x%08x' % LH_U)
A('s_mov_b32 s41, 0x%08x' % LL_U)
A('s_waitcnt lgkmcnt(0)')
A('s_load_dword s10, s[26:27], s9')
A('global_load_short_d16_hi v2, v1, s[18:19]')
A('global_load_short_d16_hi v3, v1, s[20:21]')
A('global_load_short_d16_hi v4, v1, s[22:23]')
A('global_load_short_d16_hi v5, v1, s[24:25]')
A('v_add_u32 v6, 12, v0')
A('v_and_b32 v6, 15, v6')
A('v_bfe_u32 v7, v6, 1, 2')
A('v_and_b32 v8, 1, v6')
A('v_lshl_add_u32 v7, v8, 3, v7')
A('v_lshrrev_b32 v8, 3, v6')
A('v_lshl_add_u32 v7, v8, 2, v7')
A('v_mul_u32_u24 v116, %d, v7' % TROW)
A('v_bfe_u32 v8, v0, 4, 1')
A('v_lshl_add_u32 v116, v8, 7, v116')
A('v_lshrrev_b32 v8, 5, v0')
A('v_lshl_add_u32 v116, v8, 6, v116')
A('v_add_u32 v116, s11, v116')
A('s_waitcnt lgkmcnt(0)')
A('s_lshl_b32 s12, s10, 16')
A('s_and_b32 s13, s10, 0xffff0000')
A('s_bitcmp1_b32 s7, 0')
A('s_cselect_b32 s10, s13, s12')
A('v_mov_b32 v6, s10')
exp_bf16(6, 6, 7, 8)
A('s_waitcnt vmcnt(3)')
exp_bf16(2, 2, 7, 8)
A('v_mul_f32 v2, v2, v6')
A('v_mul_f32 v2, 0x%08x, v2' % NLOG2E_U)
A('s_waitcnt vmcnt(2)')
A('v_mul_f32 v3, v3, v6')
A('v_mul_f32 v3, 0.15915494, v3')
A('v_add_f32 v6, v6, v6')
E = {k: 16 + 2 * (k - 1) for k in range(1, 16)}
E16B, E256, E512, E768, E1024 = 46, 48, 50, 52, 54
TC = [56, 58, 60, 62]
XP = [64, 66]
CV = [68, 69, 70, 71]
XF, YF = 72, 88
ACC = [104, 108, 112]
A('v_mul_f32 v7, 0x41800000, v2')
A('v_mul_f32 v8, 0x43800000, v2')
A('v_mul_f32 v9, 0x41800000, v3')
A('v_mul_f32 v10, 0x43800000, v3')
A('v_fract_f32 v3, v3')
A('v_fract_f32 v9, v9')
A('v_fract_f32 v10, v10')
A('v_exp_f32 v7, v7')
A('v_cos_f32 v11, v9')
A('v_sin_f32 v12, v9')
A('v_exp_f32 v2, v2')
A('v_cos_f32 v13, v3')
A('v_sin_f32 v14, v3')
A('v_mul_f32 v%d, v7, v11' % E16B)
A('v_mul_f32 v%d, -v7, v12' % (E16B + 1))
A('v_exp_f32 v8, v8')
A('v_cos_f32 v11, v10')
A('v_sin_f32 v12, v10')
A('v_mul_f32 v%d, v2, v13' % E[1])
A('v_mul_f32 v%d, v2, v14' % (E[1] + 1))
A('s_waitcnt vmcnt(0)')
A('v_mul_f32 v%d, v4, v6' % XP[0])
A('v_mul_f32 v%d, -v5, v6' % (XP[0] + 1))
A('v_mul_f32 v%d, v8, v11' % E256)
A('v_mul_f32 v%d, v8, v12' % (E256 + 1))

cvn = [0]


def put(row, src):
    c = CV[cvn[0] % 4]
    cvn[0] += 1
    A('v_cvt_pk_bf16_f32 v%d, v%d, v%d' % (c, src, src + 1))
    A('ds_write_addtid_b32 v%d offset:%d' % (c, TROW * rho(row)))


t0_plan = [(2, 1, 1), (3, 2, 1), (4, 2, 2), (5, 4, 1), (6, 4, 2), (7, 4, 3), (8, 4, 4)] + [(8 + k, 8, k) for k in range(1, 8)]
for i in range(16):
    cur = XP[i & 1]
    nxt = XP[(i + 1) & 1]
    f1 = f2 = None
    if i < 15:
        f1 = cmul(nxt, cur, E16B)
    if i < len(t0_plan):
        d, a, b = t0_plan[i]
        f2 = cmul(E[d], E[a], E[b])
    put(i, cur)
    if f1:
        A(f1)
    if f2:
        A(f2)
for s in range(4):
    A('ds_read_b128 %s, v116 offset:%d' % (vq(XF + 4 * s), 16 * s))
A('v_mov_b32 v%d, 0x3f80' % CV[cvn[0] % 4])
A('ds_write_addtid_b32 v%d offset:%d' % (CV[cvn[0] % 4], TROW * rho(0)))
cvn[0] += 1
f = cmul(E512, E256, E256)
put(1, E[1])
A(f)
put(2, E[2])
f = cmul(E768, E512, E256)
f2 = cmul(E1024, E512, E512)
put(3, E[3])
A(f)
A(f2)
for k in range(4, 16):
    put(k, E[k])
for s in range(4):
    A('ds_read_b128 %s, v116 offset:%d' % (vq(YF + 4 * s), 16 * s))


def mfma_tile(t, first_wait):
    for s in range(4):
        if s == 0:
            A('s_waitcnt lgkmcnt(%d)' % first_wait)
        A('v_mfma_f32_16x16x32_bf16 %s, %s, %s, %s' % (vq(ACC[t]), vq(YF + 4 * s), vq(XF + 4 * s), '0' if s == 0 else vq(ACC[t])))


t1 = []
for r in range(8):
    k = 2 * r + 2
    t1.append((r, E256, E[k] if k < 16 else E16B, k == 16))
for r in range(1, 4):
    t1.append((8 + r, E512, E[4 * r], False))
for r in range(1, 4):
    t1.append((12 + r, E768, E[4 * r], False))
pend = []
for n, (row, a, b, cj) in enumerate(t1):
    d = TC[n % 4]
    f = cmul(d, a, b, cj)
    if n == 2:
        mfma_tile(0, 0)
    if pend and n >= 2:
        while pend:
            put(*pend.pop(0))
    A(f)
    pend.append((row, d))
while pend:
    put(*pend.pop(0))
put(8, E512)
put(12, E768)
for s in range(4):
    A('ds_read_b128 %s, v116 offset:%d' % (vq(YF + 4 * s), 16 * s))
fa = cmul(TC[0], E1024, E256)
fb = cmul(TC[1], E1024, E512)
fc = cmul(TC[2], E1024, E768)
fd = cmul(TC[3], E1024, E1024)
A(fa)
A(fb)
A(fc)
A(fd)
o8 = [E[1], E[2], E[3], E[5]]
fs = [cmul(o8[0], E1024, E[8]), cmul(o8[1], TC[0], E[8]), cmul(o8[2], TC[1], E[8]), cmul(o8[3], TC[2], E[8])]
mfma_tile(1, 0)
for f in fs:
    A(f)
put(0, E1024)
put(4, TC[0])
put(8, TC[1])
put(12, TC[2])
put(2, E256)
put(3, TC[3])
put(1, o8[0])
put(5, o8[1])
put(9, o8[2])
put(13, o8[3])
for s in range(4):
    A('ds_read_b128 %s, v116 offset:%d' % (vq(YF + 4 * s), 16 * s))
A('v_lshlrev_b32 v1, 4, v0')
A('v_add_u32 v2, s11, v1')
A('s_mul_i32 s12, s5, %d' % TBL)
A('s_lshl_b32 s13, s6, 10')
A('s_add_u32 s12, s12, s13')
A('v_add_u32 v3, s12, v1')
mfma_tile(2, 0)
A('ds_write_b128 v2, %s' % vq(ACC[0]))
A('ds_write_b128 v2, %s offset:1024' % vq(ACC[1]))
A('ds_write_b128 v2, %s offset:2048' % vq(ACC[2]))
A('v_and_b32 v4, 15, v0')
A('v_lshrrev_b32 v5, 4, v0')
A('s_mul_i32 s14, s5, %d' % KCH)
A('s_add_u32 s14, s14, %d' % KB)
A('s_waitcnt lgkmcnt(0)')
stamp(1)
A('s_barrier')
A('ds_read_b128 %s, v3' % vq(16))
A('ds_read_b128 %s, v3 offset:%d' % (vq(20), 4 * TBL))
A('ds_read_b128 %s, v3 offset:%d' % (vq(24), 8 * TBL))
A('v_lshlrev_b32 v6, 5, v4')
A('s_cmp_eq_u32 s6, 1')
A('s_cbranch_scc1 L_fin1')
A('s_cmp_eq_u32 s6, 2')
A('s_cbranch_scc1 L_fin2')


def ksum():
    A('s_waitcnt lgkmcnt(1)')
    A('v_pk_add_f32 v[16:17], v[16:17], v[20:21]')
    A('v_pk_add_f32 v[18:19], v[18:19], v[22:23]')
    A('s_waitcnt lgkmcnt(0)')
    A('v_pk_add_f32 v[16:17], v[16:17], v[24:25]')
    A('v_pk_add_f32 v[18:19], v[18:19], v[26:27]')


A('v_lshl_add_u32 v6, v5, 3, v6')
A('s_add_u32 s15, s14, 4080')
A('v_sub_u32 v6, s15, v6')
A('v_lshlrev_b32 v7, 2, v0')
A('v_add_u32 v7, s14, v7')
A('v_mov_b32 v8, 0')
A('s_mov_b32 exec_hi, 0')
A('ds_write_b32 v7, v8 offset:4088')
A('ds_write_b32 v7, v8 offset:%d' % (KCOPY + 4096))
A('s_mov_b64 exec, -1')
A('s_waitcnt lgkmcnt(3)')
A('v_pk_add_f32 v[16:17], v[16:17], v[20:21]')
A('v_pk_add_f32 v[18:19], v[18:19], v[22:23]')
A('s_waitcnt lgkmcnt(2)')
A('v_pk_add_f32 v[16:17], v[16:17], v[24:25]')
A('v_pk_add_f32 v[18:19], v[18:19], v[26:27]')
A('v_cvt_pk_bf16_f32 v20, v19, v18')
A('v_cvt_pk_bf16_f32 v21, v17, v16')
A('ds_write_b64 v6, v[20:21]')
A('ds_write_b64 v6, v[20:21] offset:%d' % (KCOPY + 8))
A('s_branch L_fin_done')

A.label('L_fin1')
A('v_lshl_add_u32 v7, v5, 9, v6')
A('s_add_u32 s15, s14, 4060')
A('v_sub_u32 v7, s15, v7')
A('v_lshl_add_u32 v8, v5, 4, v6')
A('s_add_u32 s15, s14, 3556')
A('v_sub_u32 v8, s15, v8')
A('v_add_u32 v9, %d, v7' % (KCOPY + 8))
A('v_add_u32 v10, %d, v8' % (KCOPY + 8))
ksum()
A('v_cvt_pk_bf16_f32 v20, v19, v19')
A('v_cvt_pk_bf16_f32 v21, v19, v18')
A('v_cvt_pk_bf16_f32 v22, v18, v18')
A('v_cvt_pk_bf16_f32 v23, v17, v17')
A('v_cvt_pk_bf16_f32 v24, v17, v16')
A('v_cvt_pk_bf16_f32 v25, v16, v16')
A('s_mov_b32 exec_lo, 0')
for va in (7, 9):
    A('ds_write2_b32 v%d, v20, v21 offset0:0 offset1:1' % va)
    A('ds_write2_b32 v%d, v22, v22 offset0:2 offset1:3' % va)
    A('ds_write2_b32 v%d, v23, v24 offset0:4 offset1:5' % va)
    A('ds_write2_b32 v%d, v25, v25 offset0:6 offset1:7' % va)
A('s_mov_b32 exec_lo, -1')
A('s_mov_b32 exec_hi, 0')
for va in (8, 10):
    A('ds_write2_b32 v%d, v20, v21 offset0:0 offset1:1' % va)
    A('ds_write2_b32 v%d, v23, v24 offset0:2 offset1:3' % va)
A('s_mov_b64 exec, -1')
A('s_branch L_fin_done')

A.label('L_fin2')
A('v_lshl_add_u32 v7, v5, 9, v6')
A('s_add_u32 s15, s14, 2016')
A('v_sub_u32 v7, s15, v7')
A('v_add_u32 v9, %d, v7' % (KCOPY + 8))
A('v_mov_b32 v8, s14')
ksum()
A('v_cvt_pk_bf16_f32 v20, v17, v17')
A('v_cvt_pk_bf16_f32 v21, v17, v16')
A('v_cvt_pk_bf16_f32 v22, v16, v16')
A('v_cvt_pk_bf16_f32 v23, v18, v18')
A('v_cvt_pk_bf16_f32 v24, v19, v19')
for va in (7, 9):
    A('ds_write2_b32 v%d, v20, v20 offset0:0 offset1:1' % va)
    A('ds_write2_b32 v%d, v20, v21 offset0:2 offset1:3' % va)
    A('ds_write2_b32 v%d, v22, v22 offset0:4 offset1:5' % va)
    A('ds_write_b32 v%d, v22 offset:24' % va)
A('s_mov_b64 exec, -2')
for va in (7, 9):
    A('ds_write_b32 v%d, v22 offset:28' % va)
A('s_mov_b64 exec, 1')
A('ds_write_b32 v8, v23 offset:3572')
A('ds_write_b32 v8, v23 offset:%d' % (KCOPY + 3580))
A('ds_write_b32 v8, v24 offset:%d' % KCOPY)
A('ds_write_b32 v8, v24 offset:%d' % (KCOPY + 4))
A('s_mov_b64 exec, -1')

A.label('L_fin_done')
A('v_and_b32 v6, 1, v4')
A('v_mul_u32_u24 v6, %d, v6' % KCOPY)
A('v_lshrrev_b32 v7, 1, v4')
A('v_sub_u32 v7, v5, v7')
A('v_lshl_add_u32 v6, v7, 4, v6')
A('s_add_u32 s15, s14, %d' % (16 * 35))
A('v_add_u32 v1, s15, v6')
A('v_and_b32 v6, 3, v4')
A('v_lshrrev_b32 v7, 2, v4')
A('v_mul_u32_u24 v3, %d, v6' % UCOPY)
A('s_mul_i32 s15, s5, %d' % UCH)
A('s_add_u32 s15, s15, %d' % UB)
A('v_add_u32 v3, s15, v3')
A('v_lshl_add_u32 v8, v7, 3, v5')
A('v_lshl_add_u32 v2, v8, 4, v3')
A('v_add_u32 v2, 80, v2')
A('v_lshl_add_u32 v8, v7, 2, v5')
A('v_lshlrev_b32 v8, 5, v8')
A('v_lshl_add_u32 v8, v6, 2, v8')
A('s_lshl_b32 s15, s5, 12')
A('v_add_u32 v8, s15, v8')
A('v_mov_b32 v9, %d' % FB)
A('v_mov_b32 v10, 1')
A('s_waitcnt lgkmcnt(0)')
stamp(2)
A('s_barrier')
A('s_cmp_eq_u32 s6, 2')
A('s_cbranch_scc1 %s' % ('L_dump' if DUMP else 'L_end'))
A('s_cmp_eq_u32 s6, 1')
A('s_cbranch_scc1 L_convB')

A('s_setprio 2')
AC = [16, 20, 24, 28]
FA = [[32 + 4 * k for k in range(4)], [64 + 4 * k for k in range(4)]]
FBq = [[48 + 4 * k for k in range(4)], [80 + 4 * k for k in range(4)]]


def loadsA(sel):
    A('v_max_i32 v11, v2, v3')
    A('ds_read_b128 %s, v1 offset:%d' % (vq(FA[sel][0]), 512 * 7))
    A('ds_read_b128 %s, v11' % vq(FBq[sel][0]))
    for d in range(1, 4):
        A('ds_read_b128 %s, v2 offset:%d' % (vq(FBq[sel][d]), 512 * d))
    for k in range(1, 4):
        A('ds_read_b128 %s, v1 offset:%d' % (vq(FA[sel][k]), 512 * (7 - k)))
    A('v_subrev_u32 v1, 64, v1')
    A('v_subrev_u32 v2, 64, v2')


def mfmasA(sel, zero):
    for k in range(4):
        for t in range(k, 4):
            src = '0' if (zero and k == 0) else vq(AC[t])
            A('v_mfma_f32_16x16x32_bf16 %s, %s, %s, %s' % (vq(AC[t]), vq(FA[sel][k]), vq(FBq[sel][t - k]), src))


for r in range(16):
    A('v_mov_b32 v%d, 0' % (16 + r))
loadsA(0)
A('s_mov_b32 s15, 0')
A.label('L_loopA')
loadsA(1)
A('s_waitcnt lgkmcnt(8)')
mfmasA(0, False)
loadsA(0)
A('s_waitcnt lgkmcnt(8)')
mfmasA(1, False)
A('s_add_u32 s15, s15, 1')
A('s_cmp_lt_u32 s15, 4')
A('s_cbranch_scc1 L_loopA')


def stage_out(accs, t0):
    for n, acc in enumerate(accs):
        A('v_cvt_pk_bf16_f32 v%d, v%d, v%d' % (acc, acc, acc + 1))
        A('v_cvt_pk_bf16_f32 v%d, v%d, v%d' % (acc + 2, acc + 2, acc + 3))
        A('ds_write_b32 v8, v%d offset:%d' % (acc, 512 * (t0 + n)))
        A('ds_write_b32 v8, v%d offset:%d' % (acc + 2, 512 * (t0 + n) + 16))


stage_out(AC, 0)
A('s_waitcnt lgkmcnt(0)')
A('s_mov_b64 exec, 1')
A('ds_add_u32 v9, v10')
A('s_mov_b64 exec, -1')
stamp(3)
A('s_endpgm')

A.label('L_convB')
GA = [32 + 4 * k for k in range(8)]
GB = [64 + 4 * k for k in range(8)]


def ldA(k):
    A('ds_read_b128 %s, v1 offset:%d' % (vq(GA[k]), 512 * (7 - k)))


def ldB(d):
    if d == 0:
        A('ds_read_b128 %s, v11' % vq(GB[0]))
    else:
        A('ds_read_b128 %s, v2 offset:%d' % (vq(GB[d]), 512 * d))


for r in range(16):
    A('v_mov_b32 v%d, 0' % (16 + r))
A('v_max_i32 v11, v2, v3')
for k in range(8):
    ldA(k)
    ldB(7 - k)
A('s_mov_b32 s15, 0')
A.label('L_loopB')
A('v_subrev_u32 v1, 64, v1')
A('v_subrev_u32 v2, 64, v2')
A('v_max_i32 v11, v2, v3')
for k in range(8):
    if k <= 4:
        A('s_waitcnt lgkmcnt(8)')
    for t in range(max(4, k), 8):
        A('v_mfma_f32_16x16x32_bf16 %s, %s, %s, %s' % (vq(AC[t - 4]), vq(GA[k]), vq(GB[t - k]), vq(AC[t - 4])))
    ldA(k)
    ldB(7 - k)
A('s_add_u32 s15, s15, 1')
A('s_cmp_lt_u32 s15, 8')
A('s_cbranch_scc1 L_loopB')
stage_out(AC, 4)
A('s_waitcnt lgkmcnt(0)')
A('s_mov_b64 exec, 1')
A('ds_add_u32 v9, v10 offset:4')
A('s_mov_b64 exec, -1')
stamp(4)
A('s_endpgm')

A.label('L_io')
A('s_sub_u32 s5, s3, 12')
A('s_lshl_b32 s6, s5, 6')
A('v_add_u32 v1, s6, v0')
A('v_mul_u32_u24 v2, 10240, v1')
A('s_lshl_b32 s7, s4, 3')
A('v_add_u32 v2, s7, v2')
A('v_subrev_u32 v3, 3840, v2')
A('s_movk_i32 s8, 5120')
A('s_waitcnt lgkmcnt(0)')
A('s_mov_b32 s32, s16')
A('s_mov_b32 s33, s17')
A('s_mov_b32 s34, 2621440')
A('s_mov_b32 s35, 0x00020000')
A('s_mov_b32 s36, s30')
A('s_mov_b32 s37, s31')
A('s_mov_b32 s38, 2621440')
A('s_mov_b32 s39, 0x00020000')
A('s_load_dwordx2 s[42:43], s[28:29], s7')


def R(r):
    return 10 + 2 * (r + 3)


for k in range(8):
    if k < 4:
        A('buffer_load_dwordx2 %s, v2, s[32:35], 0 offen offset:%d' % (vp(R(k)), 1280 * k))
    else:
        A('buffer_load_dwordx2 %s, v2, s[32:35], s8 offen offset:%d' % (vp(R(k)), 1280 * (k - 4)))
A('s_mov_b64 exec, 1')
for k in range(3):
    A('buffer_load_dwordx2 %s, v3, s[32:35], 0 offen offset:%d' % (vp(R(k - 3)), 1280 * k))
A('s_mov_b64 exec, 0xffff')
A('v_lshrrev_b32 v4, 2, v0')
A('v_mul_u32_u24 v4, %d, v4' % UCH)
A('v_and_b32 v5, 3, v0')
A('v_mul_u32_u24 v5, %d, v5' % UCOPY)
A('v_add3_u32 v4, v4, v5, %d' % 0)
A('v_add_u32 v4, %d, v4' % UB)
for r in range(4):
    A('v_mov_b32 v%d, 0' % (40 + r))
A('v_mov_b32 v5, %d' % FB)
A('ds_write_b128 v4, v[40:43]')
A('ds_write_b64 v5, v[40:41]')
A('s_mov_b64 exec, -1')
A('v_lshlrev_b32 v6, 4, v1')
A('v_add_u32 v4, %d, v6' % UB)
A('s_mov_b32 s44, 0x05040100')
A('s_mov_b32 s45, 0x07060302')
A('s_waitcnt vmcnt(0)')
stamp(5)
for k in range(3):
    for h in range(2):
        A('v_mov_b32_dpp v%d, v%d wave_shr:1 row_mask:0xf bank_mask:0xf' % (R(k - 3) + h, R(k + 5) + h))
nq = 0
for p in (3, 2, 1, 0):
    for ch in range(4):
        qd = 40 + 4 * (nq % 4)
        nq += 1
        for w in range(4):
            r0 = p - 3 + 2 * w
            A('v_perm_b32 v%d, v%d, v%d, s%d' % (qd + w, R(r0 + 1) + (ch >> 1), R(r0) + (ch >> 1), 44 + (ch & 1)))
        A('ds_write_b128 v4, %s offset:%d' % (vq(qd), ch * UCH + p * UCOPY + 16))
A('s_waitcnt lgkmcnt(0)')
stamp(6)
A('s_barrier')
A('s_barrier')
A('s_setprio 3')
A('s_lshl_b32 s46, s42, 16')
A('s_and_b32 s47, s42, 0xffff0000')
A('s_lshl_b32 s48, s43, 16')
A('s_and_b32 s49, s43, 0xffff0000')


def T(r, ch):
    return 64 + 4 * r + ch


for r in range(8):
    for h in range(2):
        src = R(r) + h
        a, b = T(r, 2 * h), T(r, 2 * h + 1)
        A('v_lshlrev_b32 v%d, 16, v%d' % (a, src))
        A('v_and_b32 v%d, 0xffff0000, v%d' % (b, src))
        A('v_mul_f32 v%d, s%d, v%d' % (a, 46 + 2 * h, a))
        A('v_mul_f32 v%d, s%d, v%d' % (b, 47 + 2 * h, b))
        A('v_cvt_pk_bf16_f32 v%d, v%d, v%d' % (b, a, b))
        A('v_lshlrev_b32 v%d, 16, v%d' % (a, b))
        A('v_and_b32 v%d, 0xffff0000, v%d' % (b, b))
A('s_lshr_b32 s9, s5, 1')
A('s_lshl_b32 s9, s9, 2')
A('s_add_u32 s9, s9, %d' % FB)
A('v_mov_b32 v5, s9')
A.label('L_poll')
A('ds_read_b32 v7, v5')
A('s_waitcnt lgkmcnt(0)')
A('v_readfirstlane_b32 s10, v7')
A('s_cmp_eq_u32 s10, 4')
A('s_cbranch_scc1 L_poll_done')
A('s_sleep 1')
A('s_branch L_poll')
A.label('L_poll_done')
stamp(7)
for ch in range(4):
    A('ds_read_b128 %s, v6 offset:%d' % (vq(40 + 4 * ch), STG + 4096 * ch))
A('s_waitcnt lgkmcnt(0)')
for r in range(8):
    p, hh = r & 3, r >> 2
    o = 10 + 2 * (r % 4)
    tmp = [20, 21, 22, 23]
    for ch in range(4):
        y = 40 + 4 * ch + p
        if hh == 0:
            A('v_lshlrev_b32 v%d, 16, v%d' % (tmp[ch], y))
        else:
            A('v_and_b32 v%d, 0xffff0000, v%d' % (tmp[ch], y))
    for ch in range(4):
        A('v_add_f32 v%d, v%d, v%d' % (tmp[ch], tmp[ch], T(r, ch)))
    A('v_cvt_pk_bf16_f32 v%d, v%d, v%d' % (o, tmp[0], tmp[1]))
    A('v_cvt_pk_bf16_f32 v%d, v%d, v%d' % (o + 1, tmp[2], tmp[3]))
    if r < 4:
        A('buffer_store_dwordx2 %s, v2, s[36:39], 0 offen offset:%d' % (vp(o), 1280 * r))
    else:
        A('buffer_store_dwordx2 %s, v2, s[36:39], s8 offen offset:%d' % (vp(o), 1280 * (r - 4)))
if DEBUG_STAMPS:
    A('s_waitcnt vmcnt(0)')
    stamp(8)
A.label('L_end')
A('s_endpgm')
if DUMP:
    A.label('L_dump')
    A('s_cmp_lg_u32 s2, 0')
    A('s_cbranch_scc1 L_end')
    A('s_load_dwordx2 s[50:51], s[0:1], 72')
    A('s_lshl_b32 s15, s5, 10')
    A('v_lshlrev_b32 v1, 4, v0')
    A('v_add_u32 v1, s15, v1')
    A('s_mov_b32 s15, 0')
    A('s_waitcnt lgkmcnt(0)')
    A.label('L_dump_loop')
    A('v_add_u32 v2, %d, v1' % KB)
    A('ds_read_b128 v[4:7], v2')
    A('s_waitcnt lgkmcnt(0)')
    A('global_store_dwordx4 v1, v[4:7], s[50:51]')
    A('v_add_u32 v1, 4096, v1')
    A('s_add_u32 s15, s15, 1')
    A('s_cmp_lt_u32 s15, %d' % ((FB - KB) // 4096))
    A('s_waitcnt vmcnt(0)')
    A('s_cbranch_scc1 L_dump_loop')
    A('s_endpgm')

A.label('L_code_end')
body = A.finalize()

HEAD = open('cdna_kernels/%s.s.ref' % NAME).read().split('; @launch')[0]
out = HEAD + '; @launch grid=(%d,1,1) block=(1024,1,1) lds=%d\n' % (NWG, LDS_BYTES)
out += '''.amdgcn_target "amdgcn-amd-amdhsa--gfx950"
.text
.globl %s_kernel
.p2align 8
.type %s_kernel,@function
%s_kernel:
''' % (NAME, NAME, NAME)
out += body
out += '''.section .rodata,"a"
.p2align 6
.amdhsa_kernel %s_kernel
  .amdhsa_next_free_vgpr 128
  .amdhsa_next_free_sgpr 64
  .amdhsa_accum_offset 128
  .amdhsa_group_segment_fixed_size 0
  .amdhsa_kernarg_size 80
  .amdhsa_user_sgpr_count 2
  .amdhsa_user_sgpr_kernarg_segment_ptr 1
  .amdhsa_system_sgpr_workgroup_id_x 1
.end_amdhsa_kernel
''' % NAME
dst = [a for a in sys.argv[1:] if not a.startswith('--')]
open(dst[0] if dst else 'cdna_kernels/%s.s' % NAME, 'w').write(out)
print('instructions:', sum(1 for i in A.ins if i.kind != 'meta'))
```

```python
import struct, sys
from asmlib import Asm

NAME = 'standalone__ssm_conv_s4d__prompt'
DEBUG_STAMPS = '--stamps' in sys.argv
DUMP = '--dump' in sys.argv
PREFETCH = '--prefetch' in sys.argv
DELAY = [int(a.split('=')[1]) for a in sys.argv if a.startswith('--delay=')]


def f2u(x):
    return struct.unpack('<I', struct.pack('<f', x))[0]


def u2f(u):
    return struct.unpack('<f', struct.pack('<I', u))[0]


LOG2E = 1.4426950408889634
LH_U = f2u(LOG2E) & 0xFFFFFF00
LL_U = f2u(LOG2E - u2f(LH_U))
NLOG2E_U = f2u(-LOG2E)

TROW = 272
TBL = 16 * TROW
KB = 12 * TBL
KCOPY = 4224
KCH = 2 * KCOPY
UB = KB + 4 * KCH
UCOPY = 4128
UCH = 4 * UCOPY
FB = UB + 4 * UCH
LDS_BYTES = FB + 64
STG = 0
NWG = 160


def rho(i):
    ip = (i + 12) & 15
    return ((ip & 7) >> 1) + 8 * (ip & 1) + 4 * (ip >> 3)


A = Asm()


def vp(n):
    return 'v[%d:%d]' % (n, n + 1)


def vq(n):
    return 'v[%d:%d]' % (n, n + 3)


def cmul(d, a, b, conj_b=False):
    if not conj_b:
        A('v_pk_mul_f32 %s, %s, %s op_sel:[0,0] op_sel_hi:[0,1]' % (vp(d), vp(a), vp(b)))
        return 'v_pk_fma_f32 %s, %s, %s, %s op_sel:[1,1,0] op_sel_hi:[1,0,1] neg_lo:[0,1,0]' % (vp(d), vp(a), vp(b), vp(d))
    else:
        A('v_pk_mul_f32 %s, %s, %s op_sel:[0,0] op_sel_hi:[0,1] neg_hi:[0,1]' % (vp(d), vp(a), vp(b)))
        return 'v_pk_fma_f32 %s, %s, %s, %s op_sel:[1,1,0] op_sel_hi:[1,0,1]' % (vp(d), vp(a), vp(b), vp(d))


def stamp(idx):
    if not DEBUG_STAMPS:
        return
    A('s_memtime s[60:61]')
    A('s_waitcnt lgkmcnt(0)')
    A('s_sub_u32 s60, s60, s62')
    A('v_mov_b32 v126, s60')
    A('v_mov_b32 v127, %d' % (idx * 4))
    A('s_cmp_eq_u32 s2, 0')
    A('s_cselect_b64 exec, 1, 0')
    A('global_store_dword v127, v126, s[56:57]')
    A('s_mov_b64 exec, -1')


def exp_bf16(dst, src, t0, t1):
    A('v_mul_f32 v%d, s40, v%d' % (t0, src))
    A('v_mul_f32 v%d, s41, v%d' % (t1, src))
    A('v_exp_f32 v%d, v%d' % (t0, t0))
    A('v_exp_f32 v%d, v%d' % (t1, t1))
    A('v_mul_f32 v%d, v%d, v%d' % (t0, t0, t1))
    A('v_cvt_pk_bf16_f32 v%d, v%d, v%d' % (t0, t0, t0))
    A('v_and_b32 v%d, 0xffff0000, v%d' % (dst, t0))


A('s_cmp_ge_u32 s2, %d' % NWG)
A('s_cbranch_scc1 L_end')
if DELAY:
    A('s_memtime s[52:53]')
    A('s_waitcnt lgkmcnt(0)')
    A.label('L_delay')
    A('s_memtime s[54:55]')
    A('s_waitcnt lgkmcnt(0)')
    A('s_sub_u32 s54, s54, s52')
    A('s_cmp_lt_u32 s54, %d' % DELAY[0])
    A('s_cbranch_scc1 L_delay')
A('s_load_dwordx16 s[16:31], s[0:1], 0')
if DEBUG_STAMPS:
    A('s_load_dwordx2 s[56:57], s[0:1], 64')
    A('s_memtime s[62:63]')
    A('s_memrealtime s[60:61]')
    A('s_waitcnt lgkmcnt(0)')
    A('s_not_b32 s60, s60')
    A('v_mov_b32 v126, s60')
    A('v_mov_b32 v127, 40')
    A('s_mov_b64 exec, 1')
    A('global_atomic_umax v127, v126, s[56:57]')
    A('s_mov_b64 exec, -1')
if PREFETCH:
    A('s_getpc_b64 s[58:59]')
    A.label('L_pc')
    A('v_lshlrev_b32 v2, 6, v0')
    A('v_min_u32 v2, L_code_end-L_pc-4, v2')
    A('v_cmp_gt_u32 vcc, 192, v0')
    A('s_and_saveexec_b64 s[54:55], vcc')
    A('s_cbranch_execz L_nopf')
    A('global_load_dword v125, v2, s[58:59]')
    A.label('L_nopf')
    A('s_mov_b64 exec, -1')
A('v_lshrrev_b32 v1, 6, v0')
A('v_and_b32 v0, 63, v0')
A('v_readfirstlane_b32 s3, v1')
A('s_and_b32 s4, s2, 7')
A('s_mul_i32 s4, s4, 20')
A('s_lshr_b32 s5, s2, 3')
A('s_add_u32 s4, s4, s5')
A('s_cmp_ge_u32 s3, 12')
A('s_cbranch_scc1 L_io')

A('s_and_b32 s5, s3, 3')
A('s_lshr_b32 s6, s3, 2')
A('s_lshl_b32 s7, s4, 2')
A('s_add_u32 s7, s7, s5')
A('s_mul_i32 s8, s7, 384')
A('s_lshl_b32 s9, s6, 7')
A('s_add_u32 s8, s8, s9')
A('v_lshl_add_u32 v1, v0, 1, s8')
A('v_mov_b32 v2, 0')
A('v_mov_b32 v3, 0')
A('v_mov_b32 v4, 0')
A('v_mov_b32 v5, 0')
A('s_lshl_b32 s9, s7, 1')
A('s_and_b32 s9, s9, 0xfffffffc')
A('s_mul_i32 s11, s3, %d' % TBL)
A('s_mov_b32 m0, s11')
A('s_mov_b32 s40, 0x%08x' % LH_U)
A('s_mov_b32 s41, 0x%08x' % LL_U)
A('s_waitcnt lgkmcnt(0)')
A('s_load_dword s10, s[26:27], s9')
A('global_load_short_d16_hi v2, v1, s[18:19]')
A('global_load_short_d16_hi v3, v1, s[20:21]')
A('global_load_short_d16_hi v4, v1, s[22:23]')
A('global_load_short_d16_hi v5, v1, s[24:25]')
A('v_add_u32 v6, 12, v0')
A('v_and_b32 v6, 15, v6')
A('v_bfe_u32 v7, v6, 1, 2')
A('v_and_b32 v8, 1, v6')
A('v_lshl_add_u32 v7, v8, 3, v7')
A('v_lshrrev_b32 v8, 3, v6')
A('v_lshl_add_u32 v7, v8, 2, v7')
A('v_mul_u32_u24 v116, %d, v7' % TROW)
A('v_bfe_u32 v8, v0, 4, 1')
A('v_lshl_add_u32 v116, v8, 7, v116')
A('v_lshrrev_b32 v8, 5, v0')
A('v_lshl_add_u32 v116, v8, 6, v116')
A('v_add_u32 v116, s11, v116')
A('s_waitcnt lgkmcnt(0)')
A('s_lshl_b32 s12, s10, 16')
A('s_and_b32 s13, s10, 0xffff0000')
A('s_bitcmp1_b32 s7, 0')
A('s_cselect_b32 s10, s13, s12')
A('v_mov_b32 v6, s10')
exp_bf16(6, 6, 7, 8)
A('s_waitcnt vmcnt(3)')
exp_bf16(2, 2, 7, 8)
A('v_mul_f32 v2, v2, v6')
A('v_mul_f32 v2, 0x%08x, v2' % NLOG2E_U)
A('s_waitcnt vmcnt(2)')
A('v_mul_f32 v3, v3, v6')
A('v_mul_f32 v3, 0.15915494, v3')
A('v_add_f32 v6, v6, v6')
E = {k: 16 + 2 * (k - 1) for k in range(1, 16)}
E16B, E256, E512, E768, E1024 = 46, 48, 50, 52, 54
TC = [56, 58, 60, 62]
XP = [64, 66]
CV = [68, 69, 70, 71]
XF, YF = 72, 88
ACC = [104, 108, 112]
A('v_mul_f32 v7, 0x41800000, v2')
A('v_mul_f32 v8, 0x43800000, v2')
A('v_mul_f32 v9, 0x41800000, v3')
A('v_mul_f32 v10, 0x43800000, v3')
A('v_fract_f32 v3, v3')
A('v_fract_f32 v9, v9')
A('v_fract_f32 v10, v10')
A('v_exp_f32 v7, v7')
A('v_cos_f32 v11, v9')
A('v_sin_f32 v12, v9')
A('v_exp_f32 v2, v2')
A('v_cos_f32 v13, v3')
A('v_sin_f32 v14, v3')
A('v_mul_f32 v%d, v7, v11' % E16B)
A('v_mul_f32 v%d, -v7, v12' % (E16B + 1))
A('v_exp_f32 v8, v8')
A('v_cos_f32 v11, v10')
A('v_sin_f32 v12, v10')
A('v_mul_f32 v%d, v2, v13' % E[1])
A('v_mul_f32 v%d, v2, v14' % (E[1] + 1))
A('s_waitcnt vmcnt(0)')
A('v_mul_f32 v%d, v4, v6' % XP[0])
A('v_mul_f32 v%d, -v5, v6' % (XP[0] + 1))
A('v_mul_f32 v%d, v8, v11' % E256)
A('v_mul_f32 v%d, v8, v12' % (E256 + 1))

cvn = [0]


def put(row, src):
    c = CV[cvn[0] % 4]
    cvn[0] += 1
    A('v_cvt_pk_bf16_f32 v%d, v%d, v%d' % (c, src, src + 1))
    A('ds_write_addtid_b32 v%d offset:%d' % (c, TROW * rho(row)))


t0_plan = [(2, 1, 1), (3, 2, 1), (4, 2, 2), (5, 4, 1), (6, 4, 2), (7, 4, 3), (8, 4, 4)] + [(8 + k, 8, k) for k in range(1, 8)]
for i in range(16):
    cur = XP[i & 1]
    nxt = XP[(i + 1) & 1]
    f1 = f2 = None
    if i < 15:
        f1 = cmul(nxt, cur, E16B)
    if i < len(t0_plan):
        d, a, b = t0_plan[i]
        f2 = cmul(E[d], E[a], E[b])
    put(i, cur)
    if f1:
        A(f1)
    if f2:
        A(f2)
for s in range(4):
    A('ds_read_b128 %s, v116 offset:%d' % (vq(XF + 4 * s), 16 * s))
A('v_mov_b32 v%d, 0x3f80' % CV[cvn[0] % 4])
A('ds_write_addtid_b32 v%d offset:%d' % (CV[cvn[0] % 4], TROW * rho(0)))
cvn[0] += 1
f = cmul(E512, E256, E256)
put(1, E[1])
A(f)
put(2, E[2])
f = cmul(E768, E512, E256)
f2 = cmul(E1024, E512, E512)
put(3, E[3])
A(f)
A(f2)
for k in range(4, 16):
    put(k, E[k])
for s in range(4):
    A('ds_read_b128 %s, v116 offset:%d' % (vq(YF + 4 * s), 16 * s))


def mfma_tile(t, first_wait):
    for s in range(4):
        if s == 0:
            A('s_waitcnt lgkmcnt(%d)' % first_wait)
        A('v_mfma_f32_16x16x32_bf16 %s, %s, %s, %s' % (vq(ACC[t]), vq(YF + 4 * s), vq(XF + 4 * s), '0' if s == 0 else vq(ACC[t])))


t1 = []
for r in range(8):
    k = 2 * r + 2
    t1.append((r, E256, E[k] if k < 16 else E16B, k == 16))
for r in range(1, 4):
    t1.append((8 + r, E512, E[4 * r], False))
for r in range(1, 4):
    t1.append((12 + r, E768, E[4 * r], False))
pend = []
for n, (row, a, b, cj) in enumerate(t1):
    d = TC[n % 4]
    f = cmul(d, a, b, cj)
    if n == 2:
        mfma_tile(0, 0)
    if pend and n >= 2:
        while pend:
            put(*pend.pop(0))
    A(f)
    pend.append((row, d))
while pend:
    put(*pend.pop(0))
put(8, E512)
put(12, E768)
for s in range(4):
    A('ds_read_b128 %s, v116 offset:%d' % (vq(YF + 4 * s), 16 * s))
fa = cmul(TC[0], E1024, E256)
fb = cmul(TC[1], E1024, E512)
fc = cmul(TC[2], E1024, E768)
fd = cmul(TC[3], E1024, E1024)
A(fa)
A(fb)
A(fc)
A(fd)
o8 = [E[1], E[2], E[3], E[5]]
fs = [cmul(o8[0], E1024, E[8]), cmul(o8[1], TC[0], E[8]), cmul(o8[2], TC[1], E[8]), cmul(o8[3], TC[2], E[8])]
mfma_tile(1, 0)
for f in fs:
    A(f)
put(0, E1024)
put(4, TC[0])
put(8, TC[1])
put(12, TC[2])
put(2, E256)
put(3, TC[3])
put(1, o8[0])
put(5, o8[1])
put(9, o8[2])
put(13, o8[3])
for s in range(4):
    A('ds_read_b128 %s, v116 offset:%d' % (vq(YF + 4 * s), 16 * s))
A('v_lshlrev_b32 v1, 4, v0')
A('v_add_u32 v2, s11, v1')
A('s_mul_i32 s12, s5, %d' % TBL)
A('s_lshl_b32 s13, s6, 10')
A('s_add_u32 s12, s12, s13')
A('v_add_u32 v3, s12, v1')
mfma_tile(2, 0)
A('ds_write_b128 v2, %s' % vq(ACC[0]))
A('ds_write_b128 v2, %s offset:1024' % vq(ACC[1]))
A('ds_write_b128 v2, %s offset:2048' % vq(ACC[2]))
A('v_and_b32 v4, 15, v0')
A('v_lshrrev_b32 v5, 4, v0')
A('s_mul_i32 s14, s5, %d' % KCH)
A('s_add_u32 s14, s14, %d' % KB)
A('s_waitcnt lgkmcnt(0)')
stamp(1)
A('s_barrier')
A('ds_read_b128 %s, v3' % vq(16))
A('ds_read_b128 %s, v3 offset:%d' % (vq(20), 4 * TBL))
A('ds_read_b128 %s, v3 offset:%d' % (vq(24), 8 * TBL))
A('v_lshlrev_b32 v6, 5, v4')
A('s_cmp_eq_u32 s6, 1')
A('s_cbranch_scc1 L_fin1')
A('s_cmp_eq_u32 s6, 2')
A('s_cbranch_scc1 L_fin2')


def ksum():
    A('s_waitcnt lgkmcnt(1)')
    A('v_pk_add_f32 v[16:17], v[16:17], v[20:21]')
    A('v_pk_add_f32 v[18:19], v[18:19], v[22:23]')
    A('s_waitcnt lgkmcnt(0)')
    A('v_pk_add_f32 v[16:17], v[16:17], v[24:25]')
    A('v_pk_add_f32 v[18:19], v[18:19], v[26:27]')


A('v_lshl_add_u32 v6, v5, 3, v6')
A('s_add_u32 s15, s14, 4080')
A('v_sub_u32 v6, s15, v6')
A('v_lshlrev_b32 v7, 2, v0')
A('v_add_u32 v7, s14, v7')
A('v_mov_b32 v8, 0')
A('s_mov_b32 exec_hi, 0')
A('ds_write_b32 v7, v8 offset:4088')
A('ds_write_b32 v7, v8 offset:%d' % (KCOPY + 4096))
A('s_mov_b64 exec, -1')
A('s_waitcnt lgkmcnt(3)')
A('v_pk_add_f32 v[16:17], v[16:17], v[20:21]')
A('v_pk_add_f32 v[18:19], v[18:19], v[22:23]')
A('s_waitcnt lgkmcnt(2)')
A('v_pk_add_f32 v[16:17], v[16:17], v[24:25]')
A('v_pk_add_f32 v[18:19], v[18:19], v[26:27]')
A('v_cvt_pk_bf16_f32 v20, v19, v18')
A('v_cvt_pk_bf16_f32 v21, v17, v16')
A('ds_write_b64 v6, v[20:21]')
A('ds_write_b64 v6, v[20:21] offset:%d' % (KCOPY + 8))
A('s_branch L_fin_done')

A.label('L_fin1')
A('v_lshl_add_u32 v7, v5, 9, v6')
A('s_add_u32 s15, s14, 4060')
A('v_sub_u32 v7, s15, v7')
A('v_lshl_add_u32 v8, v5, 4, v6')
A('s_add_u32 s15, s14, 3556')
A('v_sub_u32 v8, s15, v8')
A('v_add_u32 v9, %d, v7' % (KCOPY + 8))
A('v_add_u32 v10, %d, v8' % (KCOPY + 8))
ksum()
A('v_cvt_pk_bf16_f32 v20, v19, v19')
A('v_cvt_pk_bf16_f32 v21, v19, v18')
A('v_cvt_pk_bf16_f32 v22, v18, v18')
A('v_cvt_pk_bf16_f32 v23, v17, v17')
A('v_cvt_pk_bf16_f32 v24, v17, v16')
A('v_cvt_pk_bf16_f32 v25, v16, v16')
A('s_mov_b32 exec_lo, 0')
for va in (7, 9):
    A('ds_write2_b32 v%d, v20, v21 offset0:0 offset1:1' % va)
    A('ds_write2_b32 v%d, v22, v22 offset0:2 offset1:3' % va)
    A('ds_write2_b32 v%d, v23, v24 offset0:4 offset1:5' % va)
    A('ds_write2_b32 v%d, v25, v25 offset0:6 offset1:7' % va)
A('s_mov_b32 exec_lo, -1')
A('s_mov_b32 exec_hi, 0')
for va in (8, 10):
    A('ds_write2_b32 v%d, v20, v21 offset0:0 offset1:1' % va)
    A('ds_write2_b32 v%d, v23, v24 offset0:2 offset1:3' % va)
A('s_mov_b64 exec, -1')
A('s_branch L_fin_done')

A.label('L_fin2')
A('v_lshl_add_u32 v7, v5, 9, v6')
A('s_add_u32 s15, s14, 2016')
A('v_sub_u32 v7, s15, v7')
A('v_add_u32 v9, %d, v7' % (KCOPY + 8))
A('v_mov_b32 v8, s14')
ksum()
A('v_cvt_pk_bf16_f32 v20, v17, v17')
A('v_cvt_pk_bf16_f32 v21, v17, v16')
A('v_cvt_pk_bf16_f32 v22, v16, v16')
A('v_cvt_pk_bf16_f32 v23, v18, v18')
A('v_cvt_pk_bf16_f32 v24, v19, v19')
for va in (7, 9):
    A('ds_write2_b32 v%d, v20, v20 offset0:0 offset1:1' % va)
    A('ds_write2_b32 v%d, v20, v21 offset0:2 offset1:3' % va)
    A('ds_write2_b32 v%d, v22, v22 offset0:4 offset1:5' % va)
    A('ds_write_b32 v%d, v22 offset:24' % va)
A('s_mov_b64 exec, -2')
for va in (7, 9):
    A('ds_write_b32 v%d, v22 offset:28' % va)
A('s_mov_b64 exec, 1')
A('ds_write_b32 v8, v23 offset:3572')
A('ds_write_b32 v8, v23 offset:%d' % (KCOPY + 3580))
A('ds_write_b32 v8, v24 offset:%d' % KCOPY)
A('ds_write_b32 v8, v24 offset:%d' % (KCOPY + 4))
A('s_mov_b64 exec, -1')

A.label('L_fin_done')
A('v_and_b32 v6, 1, v4')
A('v_mul_u32_u24 v6, %d, v6' % KCOPY)
A('v_lshrrev_b32 v7, 1, v4')
A('v_sub_u32 v7, v5, v7')
A('v_lshl_add_u32 v6, v7, 4, v6')
A('s_add_u32 s15, s14, %d' % (16 * 35))
A('v_add_u32 v1, s15, v6')
A('v_and_b32 v6, 3, v4')
A('v_lshrrev_b32 v7, 2, v4')
A('v_mul_u32_u24 v3, %d, v6' % UCOPY)
A('s_mul_i32 s15, s5, %d' % UCH)
A('s_add_u32 s15, s15, %d' % UB)
A('v_add_u32 v3, s15, v3')
A('v_lshl_add_u32 v8, v7, 3, v5')
A('v_lshl_add_u32 v2, v8, 4, v3')
A('v_add_u32 v2, 80, v2')
A('v_lshl_add_u32 v8, v7, 2, v5')
A('v_lshlrev_b32 v8, 5, v8')
A('v_lshl_add_u32 v8, v6, 2, v8')
A('s_lshl_b32 s15, s5, 12')
A('v_add_u32 v8, s15, v8')
A('v_mov_b32 v9, %d' % FB)
A('v_mov_b32 v10, 1')
A('s_waitcnt lgkmcnt(0)')
stamp(2)
A('s_barrier')
A('s_cmp_eq_u32 s6, 2')
A('s_cbranch_scc1 %s' % ('L_dump' if DUMP else 'L_end'))
A('s_cmp_eq_u32 s6, 1')
A('s_cbranch_scc1 L_convB')

A('s_setprio 2')
AC = [16, 20, 24, 28]
FA = [[32 + 4 * k for k in range(4)], [64 + 4 * k for k in range(4)]]
FBq = [[48 + 4 * k for k in range(4)], [80 + 4 * k for k in range(4)]]


def loadsA(sel):
    A('v_max_i32 v11, v2, v3')
    A('ds_read_b128 %s, v1 offset:%d' % (vq(FA[sel][0]), 512 * 7))
    A('ds_read_b128 %s, v11' % vq(FBq[sel][0]))
    for d in range(1, 4):
        A('ds_read_b128 %s, v2 offset:%d' % (vq(FBq[sel][d]), 512 * d))
    for k in range(1, 4):
        A('ds_read_b128 %s, v1 offset:%d' % (vq(FA[sel][k]), 512 * (7 - k)))
    A('v_subrev_u32 v1, 64, v1')
    A('v_subrev_u32 v2, 64, v2')


def mfmasA(sel, zero):
    for k in range(4):
        for t in range(k, 4):
            src = '0' if (zero and k == 0) else vq(AC[t])
            A('v_mfma_f32_16x16x32_bf16 %s, %s, %s, %s' % (vq(AC[t]), vq(FA[sel][k]), vq(FBq[sel][t - k]), src))


for r in range(16):
    A('v_mov_b32 v%d, 0' % (16 + r))
loadsA(0)
A('s_mov_b32 s15, 0')
A.label('L_loopA')
loadsA(1)
A('s_waitcnt lgkmcnt(8)')
mfmasA(0, False)
loadsA(0)
A('s_waitcnt lgkmcnt(8)')
mfmasA(1, False)
A('s_add_u32 s15, s15, 1')
A('s_cmp_lt_u32 s15, 4')
A('s_cbranch_scc1 L_loopA')


def stage_out(accs, t0):
    for n, acc in enumerate(accs):
        A('v_cvt_pk_bf16_f32 v%d, v%d, v%d' % (acc, acc, acc + 1))
        A('v_cvt_pk_bf16_f32 v%d, v%d, v%d' % (acc + 2, acc + 2, acc + 3))
        A('ds_write_b32 v8, v%d offset:%d' % (acc, 512 * (t0 + n)))
        A('ds_write_b32 v8, v%d offset:%d' % (acc + 2, 512 * (t0 + n) + 16))


stage_out(AC, 0)
A('s_waitcnt lgkmcnt(0)')
A('s_mov_b64 exec, 1')
A('ds_add_u32 v9, v10')
A('s_mov_b64 exec, -1')
stamp(3)
A('s_endpgm')

A.label('L_convB')
GA = [32 + 4 * k for k in range(8)]
GB = [64 + 4 * k for k in range(8)]


def ldA(k):
    A('ds_read_b128 %s, v1 offset:%d' % (vq(GA[k]), 512 * (7 - k)))


def ldB(d):
    if d == 0:
        A('ds_read_b128 %s, v11' % vq(GB[0]))
    else:
        A('ds_read_b128 %s, v2 offset:%d' % (vq(GB[d]), 512 * d))


for r in range(16):
    A('v_mov_b32 v%d, 0' % (16 + r))
A('v_max_i32 v11, v2, v3')
for k in range(8):
    ldA(k)
    ldB(7 - k)
A('s_mov_b32 s15, 0')
A.label('L_loopB')
A('v_subrev_u32 v1, 64, v1')
A('v_subrev_u32 v2, 64, v2')
A('v_max_i32 v11, v2, v3')
for k in range(8):
    if k <= 4:
        A('s_waitcnt lgkmcnt(8)')
    for t in range(max(4, k), 8):
        A('v_mfma_f32_16x16x32_bf16 %s, %s, %s, %s' % (vq(AC[t - 4]), vq(GA[k]), vq(GB[t - k]), vq(AC[t - 4])))
    ldA(k)
    ldB(7 - k)
A('s_add_u32 s15, s15, 1')
A('s_cmp_lt_u32 s15, 8')
A('s_cbranch_scc1 L_loopB')
stage_out(AC, 4)
A('s_waitcnt lgkmcnt(0)')
A('s_mov_b64 exec, 1')
A('ds_add_u32 v9, v10 offset:4')
A('s_mov_b64 exec, -1')
stamp(4)
A('s_endpgm')

A.label('L_io')
A('s_sub_u32 s5, s3, 12')
A('s_lshl_b32 s6, s5, 6')
A('v_add_u32 v1, s6, v0')
A('v_mul_u32_u24 v2, 10240, v1')
A('s_lshl_b32 s7, s4, 3')
A('v_add_u32 v2, s7, v2')
A('v_subrev_u32 v3, 3840, v2')
A('s_movk_i32 s8, 5120')
A('s_waitcnt lgkmcnt(0)')
A('s_mov_b32 s32, s16')
A('s_mov_b32 s33, s17')
A('s_mov_b32 s34, 2621440')
A('s_mov_b32 s35, 0x00020000')
A('s_mov_b32 s36, s30')
A('s_mov_b32 s37, s31')
A('s_mov_b32 s38, 2621440')
A('s_mov_b32 s39, 0x00020000')
A('s_load_dwordx2 s[42:43], s[28:29], s7')


def R(r):
    return 10 + 2 * (r + 3)


for k in range(8):
    if k < 4:
        A('buffer_load_dwordx2 %s, v2, s[32:35], 0 offen offset:%d' % (vp(R(k)), 1280 * k))
    else:
        A('buffer_load_dwordx2 %s, v2, s[32:35], s8 offen offset:%d' % (vp(R(k)), 1280 * (k - 4)))
A('s_mov_b64 exec, 1')
for k in range(3):
    A('buffer_load_dwordx2 %s, v3, s[32:35], 0 offen offset:%d' % (vp(R(k - 3)), 1280 * k))
A('s_mov_b64 exec, 0xffff')
A('v_lshrrev_b32 v4, 2, v0')
A('v_mul_u32_u24 v4, %d, v4' % UCH)
A('v_and_b32 v5, 3, v0')
A('v_mul_u32_u24 v5, %d, v5' % UCOPY)
A('v_add3_u32 v4, v4, v5, %d' % 0)
A('v_add_u32 v4, %d, v4' % UB)
for r in range(4):
    A('v_mov_b32 v%d, 0' % (40 + r))
A('v_mov_b32 v5, %d' % FB)
A('ds_write_b128 v4, v[40:43]')
A('ds_write_b64 v5, v[40:41]')
A('s_mov_b64 exec, -1')
A('v_lshlrev_b32 v6, 4, v1')
A('v_add_u32 v4, %d, v6' % UB)
A('s_mov_b32 s44, 0x05040100')
A('s_mov_b32 s45, 0x07060302')
A('s_waitcnt vmcnt(0)')
stamp(5)
for k in range(3):
    for h in range(2):
        A('v_mov_b32_dpp v%d, v%d wave_shr:1 row_mask:0xf bank_mask:0xf' % (R(k - 3) + h, R(k + 5) + h))
nq = 0
for p in (3, 2, 1, 0):
    for ch in range(4):
        qd = 40 + 4 * (nq % 4)
        nq += 1
        for w in range(4):
            r0 = p - 3 + 2 * w
            A('v_perm_b32 v%d, v%d, v%d, s%d' % (qd + w, R(r0 + 1) + (ch >> 1), R(r0) + (ch >> 1), 44 + (ch & 1)))
        A('ds_write_b128 v4, %s offset:%d' % (vq(qd), ch * UCH + p * UCOPY + 16))
A('s_waitcnt lgkmcnt(0)')
stamp(6)
A('s_barrier')
A('s_barrier')
A('s_setprio 3')
A('s_lshl_b32 s46, s42, 16')
A('s_and_b32 s47, s42, 0xffff0000')
A('s_lshl_b32 s48, s43, 16')
A('s_and_b32 s49, s43, 0xffff0000')


def T(r, ch):
    return 64 + 4 * r + ch


for r in range(8):
    for h in range(2):
        src = R(r) + h
        a, b = T(r, 2 * h), T(r, 2 * h + 1)
        A('v_lshlrev_b32 v%d, 16, v%d' % (a, src))
        A('v_and_b32 v%d, 0xffff0000, v%d' % (b, src))
        A('v_mul_f32 v%d, s%d, v%d' % (a, 46 + 2 * h, a))
        A('v_mul_f32 v%d, s%d, v%d' % (b, 47 + 2 * h, b))
        A('v_cvt_pk_bf16_f32 v%d, v%d, v%d' % (b, a, b))
        A('v_lshlrev_b32 v%d, 16, v%d' % (a, b))
        A('v_and_b32 v%d, 0xffff0000, v%d' % (b, b))
A('s_lshr_b32 s9, s5, 1')
A('s_lshl_b32 s9, s9, 2')
A('s_add_u32 s9, s9, %d' % FB)
A('v_mov_b32 v5, s9')
A.label('L_poll')
A('ds_read_b32 v7, v5')
A('s_waitcnt lgkmcnt(0)')
A('v_readfirstlane_b32 s10, v7')
A('s_cmp_eq_u32 s10, 4')
A('s_cbranch_scc1 L_poll_done')
A('s_sleep 1')
A('s_branch L_poll')
A.label('L_poll_done')
stamp(7)
for ch in range(4):
    A('ds_read_b128 %s, v6 offset:%d' % (vq(40 + 4 * ch), STG + 4096 * ch))
A('s_waitcnt lgkmcnt(0)')
for r in range(8):
    p, hh = r & 3, r >> 2
    o = 10 + 2 * (r % 4)
    tmp = [20, 21, 22, 23]
    for ch in range(4):
        y = 40 + 4 * ch + p
        if hh == 0:
            A('v_lshlrev_b32 v%d, 16, v%d' % (tmp[ch], y))
        else:
            A('v_and_b32 v%d, 0xffff0000, v%d' % (tmp[ch], y))
    for ch in range(4):
        A('v_add_f32 v%d, v%d, v%d' % (tmp[ch], tmp[ch], T(r, ch)))
    A('v_cvt_pk_bf16_f32 v%d, v%d, v%d' % (o, tmp[0], tmp[1]))
    A('v_cvt_pk_bf16_f32 v%d, v%d, v%d' % (o + 1, tmp[2], tmp[3]))
    if r < 4:
        A('buffer_store_dwordx2 %s, v2, s[36:39], 0 offen offset:%d' % (vp(o), 1280 * r))
    else:
        A('buffer_store_dwordx2 %s, v2, s[36:39], s8 offen offset:%d' % (vp(o), 1280 * (r - 4)))
if DEBUG_STAMPS:
    A('s_waitcnt vmcnt(0)')
    stamp(8)
    A('s_memrealtime s[60:61]')
    A('s_waitcnt lgkmcnt(0)')
    A('v_mov_b32 v126, s60')
    A('v_mov_b32 v127, 44')
    A('s_mov_b64 exec, 1')
    A('global_atomic_umax v127, v126, s[56:57]')
    A('s_mov_b64 exec, -1')
A.label('L_end')
A('s_endpgm')
if DUMP:
    A.label('L_dump')
    A('s_cmp_lg_u32 s2, 0')
    A('s_cbranch_scc1 L_end')
    A('s_load_dwordx2 s[50:51], s[0:1], 72')
    A('s_lshl_b32 s15, s5, 10')
    A('v_lshlrev_b32 v1, 4, v0')
    A('v_add_u32 v1, s15, v1')
    A('s_mov_b32 s15, 0')
    A('s_waitcnt lgkmcnt(0)')
    A.label('L_dump_loop')
    A('v_add_u32 v2, %d, v1' % KB)
    A('ds_read_b128 v[4:7], v2')
    A('s_waitcnt lgkmcnt(0)')
    A('global_store_dwordx4 v1, v[4:7], s[50:51]')
    A('v_add_u32 v1, 4096, v1')
    A('s_add_u32 s15, s15, 1')
    A('s_cmp_lt_u32 s15, %d' % ((FB - KB) // 4096))
    A('s_waitcnt vmcnt(0)')
    A('s_cbranch_scc1 L_dump_loop')
    A('s_endpgm')

A.label('L_code_end')
body = A.finalize()

HEAD = open('cdna_kernels/%s.s.ref' % NAME).read().split('; @launch')[0]
out = HEAD + '; @launch grid=(%d,1,1) block=(1024,1,1) lds=%d\n' % (NWG, LDS_BYTES)
out += '''.amdgcn_target "amdgcn-amd-amdhsa--gfx950"
.text
.globl %s_kernel
.p2align 8
.type %s_kernel,@function
%s_kernel:
''' % (NAME, NAME, NAME)
out += body
out += '''.section .rodata,"a"
.p2align 6
.amdhsa_kernel %s_kernel
  .amdhsa_next_free_vgpr 128
  .amdhsa_next_free_sgpr 64
  .amdhsa_accum_offset 128
  .amdhsa_group_segment_fixed_size 0
  .amdhsa_kernarg_size 80
  .amdhsa_user_sgpr_count 2
  .amdhsa_user_sgpr_kernarg_segment_ptr 1
  .amdhsa_system_sgpr_workgroup_id_x 1
.end_amdhsa_kernel
''' % NAME
dst = [a for a in sys.argv[1:] if not a.startswith('--')]
open(dst[0] if dst else 'cdna_kernels/%s.s' % NAME, 'w').write(out)
print('instructions:', sum(1 for i in A.ins if i.kind != 'meta'))
```

```python
import struct, sys
from asmlib import Asm

NAME = 'standalone__ssm_conv_s4d__prompt'
DEBUG_STAMPS = '--stamps' in sys.argv
DUMP = '--dump' in sys.argv
PREFETCH = '--prefetch' in sys.argv
EXP = [a.split('=')[1] for a in sys.argv if a.startswith('--exp=')]
DELAY = [int(a.split('=')[1]) for a in sys.argv if a.startswith('--delay=')]


def f2u(x):
    return struct.unpack('<I', struct.pack('<f', x))[0]


def u2f(u):
    return struct.unpack('<f', struct.pack('<I', u))[0]


LOG2E = 1.4426950408889634
LH_U = f2u(LOG2E) & 0xFFFFFF00
LL_U = f2u(LOG2E - u2f(LH_U))
NLOG2E_U = f2u(-LOG2E)

TROW = 272
TBL = 16 * TROW
KB = 12 * TBL
KCOPY = 4224
KCH = 2 * KCOPY
UB = KB + 4 * KCH
UCOPY = 4128
UCH = 4 * UCOPY
FB = UB + 4 * UCH
LDS_BYTES = FB + 64
STG = 0
NWG = 160


def rho(i):
    ip = (i + 12) & 15
    return ((ip & 7) >> 1) + 8 * (ip & 1) + 4 * (ip >> 3)


A = Asm()


def vp(n):
    return 'v[%d:%d]' % (n, n + 1)


def vq(n):
    return 'v[%d:%d]' % (n, n + 3)


def cmul(d, a, b, conj_b=False):
    if not conj_b:
        A('v_pk_mul_f32 %s, %s, %s op_sel:[0,0] op_sel_hi:[0,1]' % (vp(d), vp(a), vp(b)))
        return 'v_pk_fma_f32 %s, %s, %s, %s op_sel:[1,1,0] op_sel_hi:[1,0,1] neg_lo:[0,1,0]' % (vp(d), vp(a), vp(b), vp(d))
    else:
        A('v_pk_mul_f32 %s, %s, %s op_sel:[0,0] op_sel_hi:[0,1] neg_hi:[0,1]' % (vp(d), vp(a), vp(b)))
        return 'v_pk_fma_f32 %s, %s, %s, %s op_sel:[1,1,0] op_sel_hi:[1,0,1]' % (vp(d), vp(a), vp(b), vp(d))


def stamp(idx):
    if not DEBUG_STAMPS:
        return
    A('s_memtime s[60:61]')
    A('s_waitcnt lgkmcnt(0)')
    A('s_sub_u32 s%d, s60, s62' % (64 + idx))


def dump_stamps(idxs, cond):
    if not DEBUG_STAMPS:
        return
    A('s_lshl_b32 s60, s2, 8')
    A('s_add_u32 s60, s60, s3')
    A('s_cmp_eq_u32 s60, %d' % cond)
    A('s_cselect_b64 exec, 1, 0')
    for idx in idxs:
        A('v_mov_b32 v126, s%d' % (64 + idx))
        A('v_mov_b32 v127, %d' % (idx * 4))
        A('global_store_dword v127, v126, s[56:57]')
    A('s_mov_b64 exec, -1')


def exp_bf16(dst, src, t0, t1):
    A('v_mul_f32 v%d, s40, v%d' % (t0, src))
    A('v_mul_f32 v%d, s41, v%d' % (t1, src))
    A('v_exp_f32 v%d, v%d' % (t0, t0))
    A('v_exp_f32 v%d, v%d' % (t1, t1))
    A('v_mul_f32 v%d, v%d, v%d' % (t0, t0, t1))
    A('v_cvt_pk_bf16_f32 v%d, v%d, v%d' % (t0, t0, t0))
    A('v_and_b32 v%d, 0xffff0000, v%d' % (dst, t0))


def upf_addr():
    A('s_lshr_b32 s5, s2, 3')
    A('s_lshl_b32 s6, s5, 10')
    A('v_add_u32 v124, s6, v0')
    A('s_mov_b32 s6, 0x1999999a')
    A('v_mul_hi_u32 v125, v124, s6')
    A('v_mul_u32_u24 v123, 10, v125')
    A('v_sub_u32 v124, v124, v123')
    A('v_mul_u32_u24 v125, 1280, v125')
    A('v_lshl_add_u32 v124, v124, 4, v125')
    A('s_and_b32 s6, s2, 7')
    A('s_mul_i32 s6, s6, 160')
    A('v_add_u32 v124, s6, v124')


def upf():
    if 'nopf' not in EXP:
        A('global_load_dwordx4 v[120:123], v124, s[16:17]')


A('s_cmp_ge_u32 s2, %d' % NWG)
A('s_cbranch_scc1 L_end')
if DELAY:
    A('s_memtime s[52:53]')
    A('s_waitcnt lgkmcnt(0)')
    A.label('L_delay')
    A('s_memtime s[54:55]')
    A('s_waitcnt lgkmcnt(0)')
    A('s_sub_u32 s54, s54, s52')
    A('s_cmp_lt_u32 s54, %d' % DELAY[0])
    A('s_cbranch_scc1 L_delay')
A('s_load_dwordx16 s[16:31], s[0:1], 0')
if DEBUG_STAMPS:
    A('s_load_dwordx2 s[56:57], s[0:1], 64')
    A('s_memtime s[62:63]')
    A('s_memrealtime s[60:61]')
    A('s_waitcnt lgkmcnt(0)')
    A('s_not_b32 s60, s60')
    A('v_mov_b32 v126, s60')
    A('v_mov_b32 v127, 40')
    A('v_cmp_eq_u32 vcc, 768, v0')
    A('s_and_saveexec_b64 s[54:55], vcc')
    A('global_atomic_umax v127, v126, s[56:57]')
    A('s_mov_b64 exec, -1')
if PREFETCH:
    A('s_getpc_b64 s[58:59]')
    A.label('L_pc')
    A('v_lshlrev_b32 v2, 6, v0')
    A('v_min_u32 v2, L_code_end-L_pc-4, v2')
    A('v_cmp_gt_u32 vcc, 192, v0')
    A('s_and_saveexec_b64 s[54:55], vcc')
    A('s_cbranch_execz L_nopf')
    A('global_load_dword v125, v2, s[58:59]')
    A.label('L_nopf')
    A('s_mov_b64 exec, -1')
upf_addr()
A('v_lshrrev_b32 v1, 6, v0')
A('v_and_b32 v0, 63, v0')
A('v_readfirstlane_b32 s3, v1')
A('s_and_b32 s4, s2, 7')
A('s_mul_i32 s4, s4, 20')
A('s_lshr_b32 s5, s2, 3')
A('s_add_u32 s4, s4, s5')
A('s_cmp_ge_u32 s3, 12')
A('s_cbranch_scc1 L_io')

A('s_and_b32 s5, s3, 3')
A('s_lshr_b32 s6, s3, 2')
A('s_lshl_b32 s7, s4, 2')
A('s_add_u32 s7, s7, s5')
A('s_mul_i32 s8, s7, 384')
A('s_lshl_b32 s9, s6, 7')
A('s_add_u32 s8, s8, s9')
A('v_lshl_add_u32 v1, v0, 1, s8')
A('v_mov_b32 v2, 0')
A('v_mov_b32 v3, 0')
A('v_mov_b32 v4, 0')
A('v_mov_b32 v5, 0')
A('s_lshl_b32 s9, s7, 1')
A('s_and_b32 s9, s9, 0xfffffffc')
A('s_mul_i32 s11, s3, %d' % TBL)
A('s_mov_b32 m0, s11')
A('s_mov_b32 s40, 0x%08x' % LH_U)
A('s_mov_b32 s41, 0x%08x' % LL_U)
A('s_waitcnt lgkmcnt(0)')
A('s_load_dword s10, s[26:27], s9')
A('global_load_short_d16_hi v2, v1, s[18:19]')
A('global_load_short_d16_hi v3, v1, s[20:21]')
A('global_load_short_d16_hi v4, v1, s[22:23]')
A('global_load_short_d16_hi v5, v1, s[24:25]')
upf()
A('s_barrier')
A('v_add_u32 v6, 12, v0')
A('v_and_b32 v6, 15, v6')
A('v_bfe_u32 v7, v6, 1, 2')
A('v_and_b32 v8, 1, v6')
A('v_lshl_add_u32 v7, v8, 3, v7')
A('v_lshrrev_b32 v8, 3, v6')
A('v_lshl_add_u32 v7, v8, 2, v7')
A('v_mul_u32_u24 v116, %d, v7' % TROW)
A('v_bfe_u32 v8, v0, 4, 1')
A('v_lshl_add_u32 v116, v8, 7, v116')
A('v_lshrrev_b32 v8, 5, v0')
A('v_lshl_add_u32 v116, v8, 6, v116')
A('v_add_u32 v116, s11, v116')
A('v_lshlrev_b32 v117, 2, v0')
A('v_add_u32 v117, s11, v117')
A('s_waitcnt lgkmcnt(0)')
A('s_lshl_b32 s12, s10, 16')
A('s_and_b32 s13, s10, 0xffff0000')
A('s_bitcmp1_b32 s7, 0')
A('s_cselect_b32 s10, s13, s12')
A('v_mov_b32 v6, s10')
exp_bf16(6, 6, 7, 8)
A('s_waitcnt vmcnt(%d)' % (3 + (0 if 'nopf' in EXP else 1)))
exp_bf16(2, 2, 7, 8)
A('v_mul_f32 v2, v2, v6')
A('v_mul_f32 v2, 0x%08x, v2' % NLOG2E_U)
A('s_waitcnt vmcnt(%d)' % (2 + (0 if 'nopf' in EXP else 1)))
A('v_mul_f32 v3, v3, v6')
A('v_mul_f32 v3, 0.15915494, v3')
A('v_add_f32 v6, v6, v6')
E = {k: 16 + 2 * (k - 1) for k in range(1, 16)}
E16B, E256, E512, E768, E1024 = 46, 48, 50, 52, 54
TC = [56, 58, 60, 62]
XP = [64, 66]
CV = [68, 69, 70, 71]
XF, YF = 72, 88
ACC = [104, 108, 112]
A('v_mul_f32 v7, 0x41800000, v2')
A('v_mul_f32 v8, 0x43800000, v2')
A('v_mul_f32 v9, 0x41800000, v3')
A('v_mul_f32 v10, 0x43800000, v3')
A('v_fract_f32 v3, v3')
A('v_fract_f32 v9, v9')
A('v_fract_f32 v10, v10')
A('v_exp_f32 v7, v7')
A('v_cos_f32 v11, v9')
A('v_sin_f32 v12, v9')
A('v_exp_f32 v2, v2')
A('v_cos_f32 v13, v3')
A('v_sin_f32 v14, v3')
A('v_mul_f32 v%d, v7, v11' % E16B)
A('v_mul_f32 v%d, -v7, v12' % (E16B + 1))
A('v_exp_f32 v8, v8')
A('v_cos_f32 v11, v10')
A('v_sin_f32 v12, v10')
A('v_mul_f32 v%d, v2, v13' % E[1])
A('v_mul_f32 v%d, v2, v14' % (E[1] + 1))
A('s_waitcnt vmcnt(%d)' % (0 if 'nopf' in EXP else 1))
stamp(9)
if 'nok' in EXP:
    A('s_branch L_skipk')
A('v_mul_f32 v%d, v4, v6' % XP[0])
A('v_mul_f32 v%d, -v5, v6' % (XP[0] + 1))
A('v_mul_f32 v%d, v8, v11' % E256)
A('v_mul_f32 v%d, v8, v12' % (E256 + 1))

cvn = [0]


def put(row, src):
    c = CV[cvn[0] % 4]
    cvn[0] += 1
    if 'nocvt' not in EXP:
        A('v_cvt_pk_bf16_f32 v%d, v%d, v%d' % (c, src, src + 1))
    if 'nowr' in EXP:
        return
    if 'wrb32' in EXP:
        A('ds_write_b32 v117, v%d offset:%d' % (c, TROW * rho(row)))
        return
    A('ds_write_addtid_b32 v%d offset:%d' % (c, TROW * rho(row)))


t0_plan = [(2, 1, 1), (3, 2, 1), (4, 2, 2), (5, 4, 1), (6, 4, 2), (7, 4, 3), (8, 4, 4)] + [(8 + k, 8, k) for k in range(1, 8)]
for i in range(16):
    cur = XP[i & 1]
    nxt = XP[(i + 1) & 1]
    f1 = f2 = None
    if i < 15:
        f1 = cmul(nxt, cur, E16B)
    if i < len(t0_plan):
        d, a, b = t0_plan[i]
        f2 = cmul(E[d], E[a], E[b])
    put(i, cur)
    if f1:
        A(f1)
    if f2:
        A(f2)
for s in range(4):
    A('ds_read_b128 %s, v116 offset:%d' % (vq(XF + 4 * s), 16 * s))
A('v_mov_b32 v%d, 0x3f80' % CV[cvn[0] % 4])
A('ds_write_addtid_b32 v%d offset:%d' % (CV[cvn[0] % 4], TROW * rho(0)))
cvn[0] += 1
f = cmul(E512, E256, E256)
put(1, E[1])
A(f)
put(2, E[2])
f = cmul(E768, E512, E256)
f2 = cmul(E1024, E512, E512)
put(3, E[3])
A(f)
A(f2)
for k in range(4, 16):
    put(k, E[k])
for s in range(4):
    A('ds_read_b128 %s, v116 offset:%d' % (vq(YF + 4 * s), 16 * s))


def mfma_tile(t, first_wait):
    for s in range(4):
        if s == 0:
            A('s_waitcnt lgkmcnt(%d)' % first_wait)
        A('v_mfma_f32_16x16x32_bf16 %s, %s, %s, %s' % (vq(ACC[t]), vq(YF + 4 * s), vq(XF + 4 * s), '0' if s == 0 else vq(ACC[t])))


t1 = []
for r in range(8):
    k = 2 * r + 2
    t1.append((r, E256, E[k] if k < 16 else E16B, k == 16))
for r in range(1, 4):
    t1.append((8 + r, E512, E[4 * r], False))
for r in range(1, 4):
    t1.append((12 + r, E768, E[4 * r], False))
pend = []
for n, (row, a, b, cj) in enumerate(t1):
    d = TC[n % 4]
    f = cmul(d, a, b, cj)
    if n == 2:
        mfma_tile(0, 0)
    if pend and n >= 2:
        while pend:
            put(*pend.pop(0))
    A(f)
    pend.append((row, d))
while pend:
    put(*pend.pop(0))
put(8, E512)
put(12, E768)
for s in range(4):
    A('ds_read_b128 %s, v116 offset:%d' % (vq(YF + 4 * s), 16 * s))
fa = cmul(TC[0], E1024, E256)
fb = cmul(TC[1], E1024, E512)
fc = cmul(TC[2], E1024, E768)
fd = cmul(TC[3], E1024, E1024)
A(fa)
A(fb)
A(fc)
A(fd)
o8 = [E[1], E[2], E[3], E[5]]
fs = [cmul(o8[0], E1024, E[8]), cmul(o8[1], TC[0], E[8]), cmul(o8[2], TC[1], E[8]), cmul(o8[3], TC[2], E[8])]
mfma_tile(1, 0)
for f in fs:
    A(f)
put(0, E1024)
put(4, TC[0])
put(8, TC[1])
put(12, TC[2])
put(2, E256)
put(3, TC[3])
put(1, o8[0])
put(5, o8[1])
put(9, o8[2])
put(13, o8[3])
for s in range(4):
    A('ds_read_b128 %s, v116 offset:%d' % (vq(YF + 4 * s), 16 * s))
if 'nok' in EXP:
    A.label('L_skipk')
A('v_lshlrev_b32 v1, 4, v0')
A('v_add_u32 v2, s11, v1')
A('s_mul_i32 s12, s5, %d' % TBL)
A('s_lshl_b32 s13, s6, 10')
A('s_add_u32 s12, s12, s13')
A('v_add_u32 v3, s12, v1')
mfma_tile(2, 0)
A('ds_write_b128 v2, %s' % vq(ACC[0]))
A('ds_write_b128 v2, %s offset:1024' % vq(ACC[1]))
A('ds_write_b128 v2, %s offset:2048' % vq(ACC[2]))
A('v_and_b32 v4, 15, v0')
A('v_lshrrev_b32 v5, 4, v0')
A('s_mul_i32 s14, s5, %d' % KCH)
A('s_add_u32 s14, s14, %d' % KB)
A('s_waitcnt lgkmcnt(0)')
stamp(1)
A('s_barrier')
stamp(12)
A('ds_read_b128 %s, v3' % vq(16))
A('ds_read_b128 %s, v3 offset:%d' % (vq(20), 4 * TBL))
A('ds_read_b128 %s, v3 offset:%d' % (vq(24), 8 * TBL))
A('v_lshlrev_b32 v6, 5, v4')
A('s_cmp_eq_u32 s6, 1')
A('s_cbranch_scc1 L_fin1')
A('s_cmp_eq_u32 s6, 2')
A('s_cbranch_scc1 L_fin2')


def ksum():
    A('s_waitcnt lgkmcnt(1)')
    A('v_pk_add_f32 v[16:17], v[16:17], v[20:21]')
    A('v_pk_add_f32 v[18:19], v[18:19], v[22:23]')
    A('s_waitcnt lgkmcnt(0)')
    A('v_pk_add_f32 v[16:17], v[16:17], v[24:25]')
    A('v_pk_add_f32 v[18:19], v[18:19], v[26:27]')


A('v_lshl_add_u32 v6, v5, 3, v6')
A('s_add_u32 s15, s14, 4080')
A('v_sub_u32 v6, s15, v6')
A('v_lshlrev_b32 v7, 2, v0')
A('v_add_u32 v7, s14, v7')
A('v_mov_b32 v8, 0')
A('s_mov_b32 exec_hi, 0')
A('ds_write_b32 v7, v8 offset:4088')
A('ds_write_b32 v7, v8 offset:%d' % (KCOPY + 4096))
A('s_mov_b64 exec, -1')
A('s_waitcnt lgkmcnt(3)')
A('v_pk_add_f32 v[16:17], v[16:17], v[20:21]')
A('v_pk_add_f32 v[18:19], v[18:19], v[22:23]')
A('s_waitcnt lgkmcnt(2)')
A('v_pk_add_f32 v[16:17], v[16:17], v[24:25]')
A('v_pk_add_f32 v[18:19], v[18:19], v[26:27]')
A('v_cvt_pk_bf16_f32 v20, v19, v18')
A('v_cvt_pk_bf16_f32 v21, v17, v16')
A('ds_write_b64 v6, v[20:21]')
A('ds_write_b64 v6, v[20:21] offset:%d' % (KCOPY + 8))
A('s_branch L_fin_done')

A.label('L_fin1')
A('v_lshl_add_u32 v7, v5, 9, v6')
A('s_add_u32 s15, s14, 4060')
A('v_sub_u32 v7, s15, v7')
A('v_lshl_add_u32 v8, v5, 4, v6')
A('s_add_u32 s15, s14, 3556')
A('v_sub_u32 v8, s15, v8')
A('v_add_u32 v9, %d, v7' % (KCOPY + 8))
A('v_add_u32 v10, %d, v8' % (KCOPY + 8))
ksum()
A('v_cvt_pk_bf16_f32 v20, v19, v19')
A('v_cvt_pk_bf16_f32 v21, v19, v18')
A('v_cvt_pk_bf16_f32 v22, v18, v18')
A('v_cvt_pk_bf16_f32 v23, v17, v17')
A('v_cvt_pk_bf16_f32 v24, v17, v16')
A('v_cvt_pk_bf16_f32 v25, v16, v16')
A('s_mov_b32 exec_lo, 0')
for va in (7, 9):
    A('ds_write2_b32 v%d, v20, v21 offset0:0 offset1:1' % va)
    A('ds_write2_b32 v%d, v22, v22 offset0:2 offset1:3' % va)
    A('ds_write2_b32 v%d, v23, v24 offset0:4 offset1:5' % va)
    A('ds_write2_b32 v%d, v25, v25 offset0:6 offset1:7' % va)
A('s_mov_b32 exec_lo, -1')
A('s_mov_b32 exec_hi, 0')
for va in (8, 10):
    A('ds_write2_b32 v%d, v20, v21 offset0:0 offset1:1' % va)
    A('ds_write2_b32 v%d, v23, v24 offset0:2 offset1:3' % va)
A('s_mov_b64 exec, -1')
A('s_branch L_fin_done')

A.label('L_fin2')
A('v_lshl_add_u32 v7, v5, 9, v6')
A('s_add_u32 s15, s14, 2016')
A('v_sub_u32 v7, s15, v7')
A('v_add_u32 v9, %d, v7' % (KCOPY + 8))
A('v_mov_b32 v8, s14')
ksum()
A('v_cvt_pk_bf16_f32 v20, v17, v17')
A('v_cvt_pk_bf16_f32 v21, v17, v16')
A('v_cvt_pk_bf16_f32 v22, v16, v16')
A('v_cvt_pk_bf16_f32 v23, v18, v18')
A('v_cvt_pk_bf16_f32 v24, v19, v19')
for va in (7, 9):
    A('ds_write2_b32 v%d, v20, v20 offset0:0 offset1:1' % va)
    A('ds_write2_b32 v%d, v20, v21 offset0:2 offset1:3' % va)
    A('ds_write2_b32 v%d, v22, v22 offset0:4 offset1:5' % va)
    A('ds_write_b32 v%d, v22 offset:24' % va)
A('s_mov_b64 exec, -2')
for va in (7, 9):
    A('ds_write_b32 v%d, v22 offset:28' % va)
A('s_mov_b64 exec, 1')
A('ds_write_b32 v8, v23 offset:3572')
A('ds_write_b32 v8, v23 offset:%d' % (KCOPY + 3580))
A('ds_write_b32 v8, v24 offset:%d' % KCOPY)
A('ds_write_b32 v8, v24 offset:%d' % (KCOPY + 4))
A('s_mov_b64 exec, -1')

A.label('L_fin_done')
A('v_and_b32 v6, 1, v4')
A('v_mul_u32_u24 v6, %d, v6' % KCOPY)
A('v_lshrrev_b32 v7, 1, v4')
A('v_sub_u32 v7, v5, v7')
A('v_lshl_add_u32 v6, v7, 4, v6')
A('s_add_u32 s15, s14, %d' % (16 * 35))
A('v_add_u32 v1, s15, v6')
A('v_and_b32 v6, 3, v4')
A('v_lshrrev_b32 v7, 2, v4')
A('v_mul_u32_u24 v3, %d, v6' % UCOPY)
A('s_mul_i32 s15, s5, %d' % UCH)
A('s_add_u32 s15, s15, %d' % UB)
A('v_add_u32 v3, s15, v3')
A('v_lshl_add_u32 v8, v7, 3, v5')
A('v_lshl_add_u32 v2, v8, 4, v3')
A('v_add_u32 v2, 80, v2')
A('v_lshl_add_u32 v8, v7, 2, v5')
A('v_lshlrev_b32 v8, 5, v8')
A('v_lshl_add_u32 v8, v6, 2, v8')
A('s_lshl_b32 s15, s5, 12')
A('v_add_u32 v8, s15, v8')
A('v_mov_b32 v9, %d' % FB)
A('v_mov_b32 v10, 1')
A('s_waitcnt lgkmcnt(0)')
stamp(2)
A('s_barrier')
stamp(13)
A('s_cmp_eq_u32 s6, 2')
A('s_cbranch_scc1 %s' % ('L_dump' if DUMP else 'L_end'))
A('s_cmp_eq_u32 s6, 1')
A('s_cbranch_scc1 L_convB')

A('s_setprio 2')
AC = [16, 20, 24, 28]
FA = [[32 + 4 * k for k in range(4)], [64 + 4 * k for k in range(4)]]
FBq = [[48 + 4 * k for k in range(4)], [80 + 4 * k for k in range(4)]]


def loadlistA(sel):
    l = ['ds_read_b128 %s, v1 offset:%d' % (vq(FA[sel][0]), 512 * 7),
         'ds_read_b128 %s, v11' % vq(FBq[sel][0])]
    for d in range(1, 4):
        l.append('ds_read_b128 %s, v2 offset:%d' % (vq(FBq[sel][d]), 512 * d))
    for k in range(1, 4):
        l.append('ds_read_b128 %s, v1 offset:%d' % (vq(FA[sel][k]), 512 * (7 - k)))
    return l


def advA():
    A('v_subrev_u32 v1, 64, v1')
    A('v_subrev_u32 v2, 64, v2')
    A('v_max_i32 v11, v2, v3')


def halfA(sel):
    ld = loadlistA(1 - sel)
    posA = {0: 0, 1: 5, 2: 6, 3: 7}
    posB = {0: 1, 1: 2, 2: 3, 3: 4}
    n = 0
    have = -1
    for k in range(4):
        for t in range(k, 4):
            need = max(posA[k], posB[t - k])
            if need > have:
                A('s_waitcnt lgkmcnt(%d)' % ((7 - need) + min(n, 8)))
                have = need
            A('v_mfma_f32_16x16x32_bf16 %s, %s, %s, %s' % (vq(AC[t]), vq(FA[sel][k]), vq(FBq[sel][t - k]), vq(AC[t])))
            if n < 8:
                A(ld[n])
            n += 1
    advA()


A('v_max_i32 v11, v2, v3')
for x in loadlistA(0):
    A(x)
advA()
for r in range(16):
    A('v_mov_b32 v%d, 0' % (16 + r))
A('s_mov_b32 s15, 0')
A.label('L_loopA')
halfA(0)
halfA(1)
A('s_add_u32 s15, s15, 1')
A('s_cmp_lt_u32 s15, %d' % (1 if 'noA' in EXP else 4))
A('s_cbranch_scc1 L_loopA')


def stage_out(accs, t0):
    for n, acc in enumerate(accs):
        A('v_cvt_pk_bf16_f32 v%d, v%d, v%d' % (acc, acc, acc + 1))
        A('v_cvt_pk_bf16_f32 v%d, v%d, v%d' % (acc + 2, acc + 2, acc + 3))
        A('ds_write_b32 v8, v%d offset:%d' % (acc, 512 * (t0 + n)))
        A('ds_write_b32 v8, v%d offset:%d' % (acc + 2, 512 * (t0 + n) + 16))


stage_out(AC, 0)
A('s_waitcnt lgkmcnt(0)')
A('s_mov_b64 exec, 1')
A('ds_add_u32 v9, v10')
A('s_mov_b64 exec, -1')
stamp(3)
dump_stamps([3, 9, 1, 12, 2, 13], 0)
A('s_endpgm')

A.label('L_convB')
GA = [32 + 4 * k for k in range(8)]
GB = [64 + 4 * k for k in range(8)]


def ldA(k):
    A('ds_read_b128 %s, v1 offset:%d' % (vq(GA[k]), 512 * (7 - k)))


def ldB(d):
    if d == 0:
        A('ds_read_b128 %s, v11' % vq(GB[0]))
    else:
        A('ds_read_b128 %s, v2 offset:%d' % (vq(GB[d]), 512 * d))


A('v_max_i32 v11, v2, v3')
seqB = [(k, t) for k in range(8) for t in range(max(4, k), 8)]
lastA = {k: max(n for n, (kk, t) in enumerate(seqB) if kk == k) for k in range(8)}
lastB = {d: max(n for n, (kk, t) in enumerate(seqB) if t - kk == d) for d in range(8)}
firstA = {k: min(n for n, (kk, t) in enumerate(seqB) if kk == k) for k in range(8)}
firstB = {d: min(n for n, (kk, t) in enumerate(seqB) if t - kk == d) for d in range(8)}
cands = sorted([(lastA[k], 'A', k) for k in range(8)] + [(lastB[d], 'B', d) for d in range(8)])
slots = {}
n = 0
for free, kind, idx in cands:
    n = max(n, free)
    while n in slots:
        n += 1
    slots[n] = (kind, idx)
assert max(slots) < len(seqB) + 4
order = [slots[n] for n in sorted(slots)]
pos_in_order = {x: i for i, x in enumerate(order)}
for kind, idx in order:
    (ldA if kind == 'A' else ldB)(idx)
for r in range(16):
    A('v_mov_b32 v%d, 0' % (16 + r))
A('s_mov_b32 s15, 0')
A.label('L_loopB')
A('v_subrev_u32 v1, 64, v1')
A('v_subrev_u32 v2, 64, v2')
A('v_max_i32 v11, v2, v3')
issued = 0
have = -1
for n, (k, t) in enumerate(seqB):
    need = max(pos_in_order[('A', k)], pos_in_order[('B', t - k)])
    if need > have:
        A('s_waitcnt lgkmcnt(%d)' % min(15, (15 - need) + issued))
        have = need
    A('v_mfma_f32_16x16x32_bf16 %s, %s, %s, %s' % (vq(AC[t - 4]), vq(GA[k]), vq(GB[t - k]), vq(AC[t - 4])))
    if n in slots:
        kind, idx = slots[n]
        (ldA if kind == 'A' else ldB)(idx)
        issued += 1
for n in sorted(slots):
    if n >= len(seqB):
        kind, idx = slots[n]
        (ldA if kind == 'A' else ldB)(idx)
A('s_add_u32 s15, s15, 1')
A('s_cmp_lt_u32 s15, %d' % (1 if 'noB' in EXP else 8))
A('s_cbranch_scc1 L_loopB')
stage_out(AC, 4)
A('s_waitcnt lgkmcnt(0)')
A('s_mov_b64 exec, 1')
A('ds_add_u32 v9, v10 offset:4')
A('s_mov_b64 exec, -1')
stamp(4)
dump_stamps([4], 4)
A('s_endpgm')

A.label('L_io')
A('s_sub_u32 s5, s3, 12')
A('s_lshl_b32 s6, s5, 6')
A('v_add_u32 v1, s6, v0')
A('v_mul_u32_u24 v2, 10240, v1')
A('s_lshl_b32 s7, s4, 3')
A('v_add_u32 v2, s7, v2')
A('v_subrev_u32 v3, 3840, v2')
A('s_movk_i32 s8, 5120')
A('s_waitcnt lgkmcnt(0)')
A('s_mov_b32 s32, s16')
A('s_mov_b32 s33, s17')
A('s_mov_b32 s34, 2621440')
A('s_mov_b32 s35, 0x00020000')
A('s_mov_b32 s36, s30')
A('s_mov_b32 s37, s31')
A('s_mov_b32 s38, 2621440')
A('s_mov_b32 s39, 0x00020000')
A('s_load_dwordx2 s[42:43], s[28:29], s7')
upf()
A('s_setprio 3')
A('s_barrier')
stamp(14)


def R(r):
    return 10 + 2 * (r + 3)


for k in range(8):
    if 'gl' in EXP:
        if k == 0:
            A('v_add_u32 v7, 5120, v2')
        A('global_load_dwordx2 %s, v%d, s[16:17] offset:%d' % (vp(R(k)), 2 if k < 4 else 7, 1280 * (k & 3)))
    elif k < 4:
        A('buffer_load_dwordx2 %s, v2, s[32:35], 0 offen offset:%d' % (vp(R(k)), 1280 * k))
    else:
        A('buffer_load_dwordx2 %s, v2, s[32:35], s8 offen offset:%d' % (vp(R(k)), 1280 * (k - 4)))
A('s_mov_b64 exec, 1')
for k in range(3):
    A('buffer_load_dwordx2 %s, v3, s[32:35], 0 offen offset:%d' % (vp(R(k - 3)), 1280 * k))
A('s_mov_b64 exec, 0xffff')
A('v_lshrrev_b32 v4, 2, v0')
A('v_mul_u32_u24 v4, %d, v4' % UCH)
A('v_and_b32 v5, 3, v0')
A('v_mul_u32_u24 v5, %d, v5' % UCOPY)
A('v_add3_u32 v4, v4, v5, %d' % 0)
A('v_add_u32 v4, %d, v4' % UB)
for r in range(4):
    A('v_mov_b32 v%d, 0' % (40 + r))
A('v_mov_b32 v5, %d' % FB)
A('ds_write_b128 v4, v[40:43]')
A('ds_write_b64 v5, v[40:41]')
A('s_mov_b64 exec, -1')
A('v_lshlrev_b32 v6, 4, v1')
A('v_add_u32 v4, %d, v6' % UB)
A('s_mov_b32 s44, 0x05040100')
A('s_mov_b32 s45, 0x07060302')
A('s_waitcnt lgkmcnt(0)')
stamp(15)
A('s_barrier')
A('s_waitcnt vmcnt(0)')
stamp(5)
for k in range(3):
    for h in range(2):
        A('v_mov_b32_dpp v%d, v%d wave_shr:1 row_mask:0xf bank_mask:0xf' % (R(k - 3) + h, R(k + 5) + h))
nq = 0
for p in (3, 2, 1, 0):
    for ch in range(4):
        qd = 40 + 4 * (nq % 4)
        nq += 1
        for w in range(4):
            r0 = p - 3 + 2 * w
            A('v_perm_b32 v%d, v%d, v%d, s%d' % (qd + w, R(r0 + 1) + (ch >> 1), R(r0) + (ch >> 1), 44 + (ch & 1)))
        A('ds_write_b128 v4, %s offset:%d' % (vq(qd), ch * UCH + p * UCOPY + 16))
A('s_waitcnt lgkmcnt(0)')
stamp(6)
A('s_barrier')
A('s_lshl_b32 s46, s42, 16')
A('s_and_b32 s47, s42, 0xffff0000')
A('s_lshl_b32 s48, s43, 16')
A('s_and_b32 s49, s43, 0xffff0000')


def T(r, ch):
    return 64 + 4 * r + ch


for r in range(8):
    for h in range(2):
        src = R(r) + h
        a, b = T(r, 2 * h), T(r, 2 * h + 1)
        A('v_lshlrev_b32 v%d, 16, v%d' % (a, src))
        A('v_and_b32 v%d, 0xffff0000, v%d' % (b, src))
        A('v_mul_f32 v%d, s%d, v%d' % (a, 46 + 2 * h, a))
        A('v_mul_f32 v%d, s%d, v%d' % (b, 47 + 2 * h, b))
        A('v_cvt_pk_bf16_f32 v%d, v%d, v%d' % (b, a, b))
        A('v_lshlrev_b32 v%d, 16, v%d' % (a, b))
        A('v_and_b32 v%d, 0xffff0000, v%d' % (b, b))
A('s_lshr_b32 s9, s5, 1')
A('s_lshl_b32 s9, s9, 2')
A('s_add_u32 s9, s9, %d' % FB)
A('v_mov_b32 v5, s9')
A.label('L_poll')
A('ds_read_b32 v7, v5')
A('s_waitcnt lgkmcnt(0)')
A('v_readfirstlane_b32 s10, v7')
A('s_cmp_eq_u32 s10, 4')
A('s_cbranch_scc1 L_poll_done')
A('s_sleep 1')
A('s_branch L_poll')
A.label('L_poll_done')
stamp(7)
for ch in range(4):
    A('ds_read_b128 %s, v6 offset:%d' % (vq(40 + 4 * ch), STG + 4096 * ch))
A('s_waitcnt lgkmcnt(0)')
for r in range(8):
    p, hh = r & 3, r >> 2
    o = 10 + 2 * (r % 4)
    tmp = [20, 21, 22, 23]
    for ch in range(4):
        y = 40 + 4 * ch + p
        if hh == 0:
            A('v_lshlrev_b32 v%d, 16, v%d' % (tmp[ch], y))
        else:
            A('v_and_b32 v%d, 0xffff0000, v%d' % (tmp[ch], y))
    for ch in range(4):
        A('v_add_f32 v%d, v%d, v%d' % (tmp[ch], tmp[ch], T(r, ch)))
    A('v_cvt_pk_bf16_f32 v%d, v%d, v%d' % (o, tmp[0], tmp[1]))
    A('v_cvt_pk_bf16_f32 v%d, v%d, v%d' % (o + 1, tmp[2], tmp[3]))
    if r < 4:
        A('buffer_store_dwordx2 %s, v2, s[36:39], 0 offen offset:%d' % (vp(o), 1280 * r))
    else:
        A('buffer_store_dwordx2 %s, v2, s[36:39], s8 offen offset:%d' % (vp(o), 1280 * (r - 4)))
if DEBUG_STAMPS:
    A('s_waitcnt vmcnt(0)')
    stamp(8)
    dump_stamps([5, 6, 7, 8, 14, 15], 15)
    A('s_memrealtime s[60:61]')
    A('s_waitcnt lgkmcnt(0)')
    A('v_mov_b32 v126, s60')
    A('v_mov_b32 v127, 44')
    A('s_cmp_eq_u32 s5, 3')
    A('s_cselect_b64 exec, 1, 0')
    A('global_atomic_umax v127, v126, s[56:57]')
    A('s_mov_b64 exec, -1')
A.label('L_end')
A('s_endpgm')
if DUMP:
    A.label('L_dump')
    A('s_cmp_lg_u32 s2, 0')
    A('s_cbranch_scc1 L_end')
    A('s_load_dwordx2 s[50:51], s[0:1], 72')
    A('s_lshl_b32 s15, s5, 10')
    A('v_lshlrev_b32 v1, 4, v0')
    A('v_add_u32 v1, s15, v1')
    A('s_mov_b32 s15, 0')
    A('s_waitcnt lgkmcnt(0)')
    A.label('L_dump_loop')
    A('v_add_u32 v2, %d, v1' % KB)
    A('ds_read_b128 v[4:7], v2')
    A('s_waitcnt lgkmcnt(0)')
    A('global_store_dwordx4 v1, v[4:7], s[50:51]')
    A('v_add_u32 v1, 4096, v1')
    A('s_add_u32 s15, s15, 1')
    A('s_cmp_lt_u32 s15, %d' % ((FB - KB) // 4096))
    A('s_waitcnt vmcnt(0)')
    A('s_cbranch_scc1 L_dump_loop')
    A('s_endpgm')

A.label('L_code_end')
body = A.finalize()

HEAD = open('cdna_kernels/%s.s.ref' % NAME).read().split('; @launch')[0]
out = HEAD + '; @launch grid=(%d,1,1) block=(1024,1,1) lds=%d\n' % (NWG, LDS_BYTES)
out += '''.amdgcn_target "amdgcn-amd-amdhsa--gfx950"
.text
.globl %s_kernel
.p2align 8
.type %s_kernel,@function
%s_kernel:
''' % (NAME, NAME, NAME)
out += body
out += '''.section .rodata,"a"
.p2align 6
.amdhsa_kernel %s_kernel
  .amdhsa_next_free_vgpr 128
  .amdhsa_next_free_sgpr %d
  .amdhsa_accum_offset 128
  .amdhsa_group_segment_fixed_size 0
  .amdhsa_kernarg_size 80
  .amdhsa_user_sgpr_count 2
  .amdhsa_user_sgpr_kernarg_segment_ptr 1
  .amdhsa_system_sgpr_workgroup_id_x 1
.end_amdhsa_kernel
''' % (NAME, 96 if DEBUG_STAMPS else 64)
dst = [a for a in sys.argv[1:] if not a.startswith('--')]
open(dst[0] if dst else 'cdna_kernels/%s.s' % NAME, 'w').write(out)
print('instructions:', sum(1 for i in A.ins if i.kind != 'meta'))
```
